```python
import torch

def _softmax(x, axis=-1):
    return torch.softmax(x, dim=axis)
def _gelu(x):
    return torch.nn.functional.gelu(x, approximate="tanh")
def _silu(x):
    return torch.nn.functional.silu(x)
def _sigmoid(x):
    return torch.sigmoid(x)
def _layernorm(x, axis=-1, eps=1e-5):
    m = x.mean(dim=axis, keepdim=True)
    v = x.var(dim=axis, keepdim=True, unbiased=False)
    return (x - m) / torch.sqrt(v + eps)
def _scatter_add(tgt, idx, src, axis=0):
    return tgt.clone().index_add_(axis, idx, src)
def _segment_sum(src, seg, n):
    out = torch.zeros((n,) + src.shape[1:], dtype=src.dtype)
    return out.index_add_(0, seg, src)
def _pad(x, pw):
    flat = tuple(v for pair in reversed(pw) for v in pair)
    return torch.nn.functional.pad(x, flat)

kernel_name = 'concat_heads__gqa_block_cached__mha_block_cached__near_ridge'

def setup_inputs():

    _w = (lambda a: (lambda t: t.to(torch.bfloat16) if t.is_floating_point() else t)(torch.as_tensor(a)))
    def _A_setup():
        B, Sq, D = 8, 80, 576
        Hq, Hkv, Sk, Dh = 32, 16, 1024, 128
        assert Hq % Hkv == 0, (Hq, Hkv)
        return {
            "x": _w((lambda *s: torch.randn(*s, dtype=torch.bfloat16) * 0.8)(B, Sq, D)),
            "k_cache": _w((lambda *s: torch.randn(*s, dtype=torch.bfloat16) * 0.8)(B, Hkv, Sk, Dh)),
            "v_cache": _w((lambda *s: torch.randn(*s, dtype=torch.bfloat16) * 0.05)(B, Hkv, Sk, Dh)),
            "wq": _w((lambda *s: torch.randn(*s, dtype=torch.bfloat16) * 0.8)(D, Hq * Dh) * (D ** -0.5)),
            "wo": _w((lambda *s: torch.randn(*s, dtype=torch.bfloat16) * 0.05)(Hq * Dh, D) * ((Hq * Dh) ** -0.5)),
        }
    _A_in = _A_setup()

    def _B_setup():
        B, Sq, D = 8, 80, 576
        H, Sk, Dh = 32, 1024, 128
        return {
            "x": _w((lambda *s: torch.randn(*s, dtype=torch.bfloat16) * 0.8)(B, Sq, D)),
            "k_cache": _w((lambda *s: torch.randn(*s, dtype=torch.bfloat16) * 0.8)(B, H, Sk, Dh)),
            "v_cache": _w((lambda *s: torch.randn(*s, dtype=torch.bfloat16) * 0.05)(B, H, Sk, Dh)),
            "wq": _w((lambda *s: torch.randn(*s, dtype=torch.bfloat16) * 0.8)(D, H * Dh) * (D ** -0.5)),
            "wo": _w((lambda *s: torch.randn(*s, dtype=torch.bfloat16) * 0.05)(H * Dh, D) * ((H * Dh) ** -0.5)),
        }
    _B_in = _B_setup()

    return {
        "A_x": _A_in["x"],
        "A_k_cache": _A_in["k_cache"],
        "A_v_cache": _A_in["v_cache"],
        "A_wq": _A_in["wq"],
        "A_wo": _A_in["wo"],
        "B_x": _B_in["x"],
        "B_k_cache": _B_in["k_cache"],
        "B_v_cache": _B_in["v_cache"],
        "B_wq": _B_in["wq"],
        "B_wo": _B_in["wo"],
    }

def reference(A_x, A_k_cache, A_v_cache, A_wq, A_wo, B_x, B_k_cache, B_v_cache, B_wq, B_wo):
    def _A_ref(x, k_cache, v_cache, wq, wo):
        B, Sq, D = x.shape
        Hq, Dh = 32, 128
        Hkv = k_cache.shape[1]
        rep = Hq // Hkv
        q = (lambda x, *d: x.permute(*d))((x @ wq).reshape(B, Sq, Hq, Dh), 0, 2, 1, 3)
        k = (lambda x, n, axis: torch.repeat_interleave(x, n, dim=axis))(k_cache, rep, axis=1)
        v = (lambda x, n, axis: torch.repeat_interleave(x, n, dim=axis))(v_cache, rep, axis=1)
        scores = torch.einsum("bhqd,bhkd->bhqk", q, k) * (Dh ** -0.5)
        p = _softmax(scores, axis=-1)
        o = torch.einsum("bhqk,bhkd->bhqd", p, v)
        return (lambda x, *d: x.permute(*d))(o, 0, 2, 1, 3).reshape(B, Sq, Hq * Dh) @ wo

    def _B_ref(x, k_cache, v_cache, wq, wo):
        B, Sq, D = x.shape
        H, Dh = 32, 128
        q = (lambda x, *d: x.permute(*d))((x @ wq).reshape(B, Sq, H, Dh), 0, 2, 1, 3)
        scores = torch.einsum("bhqd,bhkd->bhqk", q, k_cache) * (Dh ** -0.5)
        p = _softmax(scores, axis=-1)
        o = torch.einsum("bhqk,bhkd->bhqd", p, v_cache)
        return (lambda x, *d: x.permute(*d))(o, 0, 2, 1, 3).reshape(B, Sq, H * Dh) @ wo

    a = _A_ref(A_x, A_k_cache, A_v_cache, A_wq, A_wo)
    b = _B_ref(B_x, B_k_cache, B_v_cache, B_wq, B_wo)
    return torch.concatenate([a, b], axis=-1)
```

```python
import re


class R:
    __slots__ = ("k", "n", "c")

    def __init__(self, k, n, c=1):
        self.k, self.n, self.c = k, n, c

    def __str__(self):
        if self.k in ("vcc", "exec", "m0", "scc"):
            return self.k
        return f"{self.k}{self.n}" if self.c == 1 else f"{self.k}[{self.n}:{self.n + self.c - 1}]"

    def regs(self):
        if self.k == "vcc":
            return [("vcc", 0)]
        if self.k in ("exec", "m0", "scc"):
            return [(self.k, 0)]
        return [(self.k, self.n + i) for i in range(self.c)]

    def __getitem__(self, i):
        if isinstance(i, slice):
            a = i.start or 0
            b = self.c if i.stop is None else i.stop
            return R(self.k, self.n + a, b - a)
        assert 0 <= i < self.c, (i, self.c)
        return R(self.k, self.n + i, 1)

    def sub(self, off, cnt):
        assert off + cnt <= self.c, (off, cnt, self.c)
        return R(self.k, self.n + off, cnt)


def V(n, c=1):
    assert 0 <= n and n + c <= 256, (n, c)
    return R("v", n, c)


def A(n, c=1):
    assert 0 <= n and n + c <= 256, (n, c)
    return R("a", n, c)


def S(n, c=1):
    assert 0 <= n and n + c <= 102, (n, c)
    return R("s", n, c)


VCC = R("vcc", 0)
EXEC = R("exec", 0)
M0 = R("m0", 0)
SCC = ("scc", 0)


class Neg:
    def __init__(self, r):
        self.r = r

    def __str__(self):
        return "-" + str(self.r)

    def regs(self):
        return self.r.regs()


TRANS = ("v_exp_f32", "v_log_f32", "v_rcp_f32", "v_rsq_f32", "v_sqrt_f32", "v_sin_f32", "v_cos_f32")


def _regs(x):
    return x.regs() if isinstance(x, (R, Neg)) else []


class Ins:
    __slots__ = ("op", "ops", "mods", "kind", "defs", "uses", "tag", "srcc", "passes", "ab", "target", "comment", "ldsuse")

    def __init__(self, op, ops, mods="", tag=None, comment=None):
        self.op, self.ops, self.mods, self.tag, self.comment = op, list(ops), mods, tag, comment
        self.srcc = []
        self.ab = []
        self.passes = 0
        self.target = None
        self.ldsuse = None
        d, u = [], []
        o = self.ops
        allr = lambda xs: [r for x in xs for r in _regs(x)]
        if op.startswith("v_mfma"):
            self.kind = "mfma"
            d = _regs(o[0]); self.ab = allr(o[1:3]); self.srcc = _regs(o[3]); u = self.ab + self.srcc
            self.passes = 8 if "32x32" in op else 4
        elif op.startswith("v_"):
            self.kind = "trans" if op.replace("_e32", "").replace("_e64", "") in TRANS else "valu"
            if op.startswith("v_cmp"):
                d = _regs(o[0]); u = allr(o[1:])
            elif "permlane" in op and "swap" in op:
                d = allr(o[:2]); u = allr(o[:2])
            elif op.startswith(("v_fmac", "v_pk_fmac", "v_dot2c")):
                d = _regs(o[0]); u = allr(o)
            elif op.startswith("v_writelane"):
                d = _regs(o[0]); u = allr(o)
            elif op.startswith(("v_add_co", "v_sub_co", "v_addc_co", "v_subb_co")):
                d = allr(o[:2]); u = allr(o[2:])
            else:
                d = _regs(o[0]); u = allr(o[1:])
                if op.startswith("v_cndmask") and len(o) == 3:
                    u += [("vcc", 0)]
        elif op.startswith("ds_"):
            self.kind = "ds"
            if op.startswith(("ds_read", "ds_bpermute", "ds_permute", "ds_swizzle")):
                d = _regs(o[0]); u = allr(o[1:])
            else:
                u = allr(o)
        elif op.startswith(("buffer_", "global_")):
            self.kind = "vmem"
            if op in ("buffer_wbl2", "buffer_inv"):
                pass
            elif " lds" in " " + mods or "load_lds" in op:
                u = allr(o) + [("m0", 0)]
            elif "_load" in op:
                d = _regs(o[0]); u = allr(o[1:])
            elif "atomic" in op and "sc0" in mods:
                d = _regs(o[0]); u = allr(o[1:])
            else:
                u = allr(o)
        elif op.startswith(("s_load", "s_memrealtime", "s_memtime")):
            self.kind = "smem"
            d = _regs(o[0]); u = allr(o[1:])
        elif op == "s_waitcnt":
            self.kind = "wait"
        elif op == "s_nop":
            self.kind = "nop"
        elif op == "s_barrier":
            self.kind = "barrier"
        elif op in ("s_endpgm",):
            self.kind = "end"
        elif op == "s_call_b64":
            self.kind = "call"; self.target = o[1]; d = _regs(o[0])
        elif op == "s_setpc_b64":
            self.kind = "ret"; u = _regs(o[0])
        elif op.startswith(("s_branch", "s_cbranch")):
            self.kind = "branch"
            self.target = o[0]
            if "scc" in op: u = [SCC]
            if "vcc" in op: u = [("vcc", 0)]
            if "exec" in op: u = [("exec", 0)]
        elif op.startswith("s_"):
            self.kind = "salu"
            if op.startswith(("s_cmp", "s_bitcmp")):
                d = [SCC]; u = allr(o)
            elif op in ("s_setprio", "s_sleep", "s_sethalt"):
                pass
            elif op.startswith("s_getreg"):
                d = _regs(o[0])
            else:
                d = _regs(o[0]); u = allr(o[1:])
                if op.startswith(("s_add", "s_sub", "s_and", "s_or", "s_xor", "s_lshl", "s_lshr", "s_ashr", "s_min", "s_max", "s_andn2", "s_orn2", "s_not", "s_bfe")):
                    d = d + [SCC]
                if op.startswith(("s_addc", "s_subb", "s_cselect")):
                    u = u + [SCC]
                if "saveexec" in op:
                    d = d + [("exec", 0)]; u = u + [("exec", 0)]
                if op.startswith(("s_addk", "s_mulk")):
                    u = u + _regs(o[0])
        else:
            raise ValueError("unknown op " + op)
        self.defs, self.uses = d, u

    def text(self):
        if self.op == "s_waitcnt":
            s = "s_waitcnt " + self.mods
        else:
            s = self.op
            if self.ops:
                s += " " + ", ".join(str(x) for x in self.ops)
            if self.mods:
                s += " " + self.mods
        if self.comment:
            s += "   ; " + self.comment
        return s


class Label:
    def __init__(self, name):
        self.name = name


class Prog:
    def __init__(self):
        self.items = []
        self._uid = 0

    def __call__(self, op, *ops, mods="", tag=None, comment=None):
        i = Ins(op, ops, mods, tag, comment)
        self.items.append(i)
        return i

    def add(self, ins):
        if isinstance(ins, (list, tuple)):
            for x in ins: self.add(x)
        else:
            self.items.append(ins)

    def label(self, name):
        self.items.append(Label(name))

    def uid(self, base):
        self._uid += 1
        return f"{base}_{self._uid}"

    def wait(self, vm=None, lgkm=None):
        m = []
        if vm is not None:
            assert 0 <= vm <= 63, vm
            m.append(f"vmcnt({vm})")
        if lgkm is not None:
            assert 0 <= lgkm <= 15, lgkm
            m.append(f"lgkmcnt({lgkm})")
        return self("s_waitcnt", mods=" ".join(m))

    def nop(self, n):
        while n > 0:
            k = min(n, 16)
            self("s_nop", k - 1)
            n -= k

    def text(self):
        out = []
        for it in self.items:
            if isinstance(it, Label):
                out.append(it.name + ":")
            elif isinstance(it, str):
                out.append(it)
            else:
                out.append("    " + it.text())
        return "\n".join(out) + "\n"


def mk(op, *ops, mods="", tag=None, comment=None):
    return Ins(op, ops, mods, tag, comment)


def mkwait(vm=None, lgkm=None):
    m = []
    if vm is not None:
        assert 0 <= vm <= 63, vm
        m.append(f"vmcnt({vm})")
    if lgkm is not None:
        assert 0 <= lgkm <= 15, lgkm
        m.append(f"lgkmcnt({lgkm})")
    return Ins("s_waitcnt", (), " ".join(m))


CAP = 24


def _states(ins):
    if ins.kind == "nop":
        return int(ins.ops[0]) + 1
    return 1


class HState:
    def __init__(self):
        self.m = {}

    def copy(self):
        h = HState(); h.m = dict(self.m); return h

    def merge(self, o):
        ch = False
        for k, v in o.m.items():
            if k not in self.m or v < self.m[k]:
                self.m[k] = v; ch = True
        return ch

    def age(self, ev, reg):
        return self.m.get((ev, reg), 1000)

    def step(self, n):
        dead = []
        for k in self.m:
            self.m[k] += n
            if self.m[k] > CAP: dead.append(k)
        for k in dead: del self.m[k]


def need(ins, st):
    req = 0

    def chk(ev, regs, n):
        nonlocal req
        for r in regs:
            a = st.age(ev, r)
            if a < n and n - a > req:
                req = n - a

    k = ins.kind
    vec = lambda rs: [r for r in rs if r[0] in ("v", "a")]
    sg = lambda rs: [r for r in rs if r[0] in ("s", "vcc")]
    if k == "mfma":
        chk("valu_w", vec(ins.uses), 2)
        chk("mfma_w4", ins.ab, 8); chk("mfma_w8", ins.ab, 12)
        key = ("mfma_exact", (ins.op, tuple(ins.srcc)))
        for r in ins.srcc:
            for ev, n in (("mfma_w4", 6), ("mfma_w8", 10)):
                a = st.age(ev, r)
                if a < n:
                    prod = st.m.get(("mfma_sig", r))
                    sig = st.__dict__.get("sig", {}).get(r)
                    if sig != (ins.op, tuple(ins.srcc)):
                        req = max(req, n - a)
        for r in ins.defs:
            if r not in ins.srcc:
                chk("mfma_w4", [r], 6); chk("mfma_w8", [r], 10)
    if k in ("valu", "trans"):
        chk("mfma_w4", vec(ins.uses) + vec(ins.defs), 8)
        chk("mfma_w8", vec(ins.uses) + vec(ins.defs), 12)
        chk("mfma_c4", vec(ins.defs), 3); chk("mfma_c8", vec(ins.defs), 7)
        if k == "valu":
            chk("trans_w", vec(ins.uses), 1)
        chk("valu_sw", sg(ins.uses), 2)
        chk("st_data", vec(ins.defs), 2)
        if ins.op.startswith(("v_readlane", "v_readfirstlane")):
            chk("valu_w", vec(ins.uses), 1)
        if ins.op.startswith(("v_readlane", "v_writelane")):
            chk("valu_sw", sg(ins.uses), 4)
        if "permlane" in ins.op:
            chk("valu_w", vec(ins.uses), 2)
        if ins.op.startswith("v_dot"):
            chk("dot_w", vec([r for x in ins.ops[1:] for r in _regs(x)]), 3)
        else:
            chk("dot_w", vec(ins.uses) + vec(ins.defs), 3)
        if "dpp" in ins.op or "row_" in ins.mods or "quad_perm" in ins.mods:
            chk("valu_w", vec(ins.uses), 2)
    if k == "mfma":
        chk("dot_w", vec(ins.uses), 3)
    if k in ("vmem", "ds"):
        chk("dot_w", vec(ins.uses), 3)
        chk("mfma_w4", vec(ins.uses) + vec(ins.defs), 8)
        chk("mfma_w8", vec(ins.uses) + vec(ins.defs), 12)
        chk("st_data", vec(ins.defs), 1)
        if k == "vmem":
            chk("valu_sw", sg(ins.uses), 5)
            if ("m0", 0) in ins.uses:
                chk("m0w", [("m0", 0)], 1)
    return req


def update(ins, st):
    n = _states(ins)
    st.step(n)
    k = ins.kind
    if not hasattr(st, "sig"): st.sig = {}
    if k in ("valu", "trans"):
        for r in ins.defs:
            if r[0] in ("v", "a"):
                st.m[("valu_w", r)] = 0
                if k == "trans": st.m[("trans_w", r)] = 0
                else: st.m.pop(("trans_w", r), None)
                st.m.pop(("mfma_w4", r), None); st.m.pop(("mfma_w8", r), None)
                if ins.op.startswith("v_dot"): st.m[("dot_w", r)] = 0
                else: st.m.pop(("dot_w", r), None)
            elif r[0] in ("s", "vcc"):
                st.m[("valu_sw", r)] = 0
    elif k == "mfma":
        ev = "mfma_w4" if ins.passes == 4 else "mfma_w8"
        for r in ins.defs:
            st.m[(ev, r)] = 0
            st.sig[r] = (ins.op, tuple(ins.defs))
        evc = "mfma_c4" if ins.passes == 4 else "mfma_c8"
        for r in ins.srcc:
            st.m[(evc, r)] = 0
    elif k == "salu":
        if ("m0", 0) in ins.defs: st.m[("m0w", ("m0", 0))] = 0
        for r in ins.defs:
            st.m.pop(("valu_sw", r), None)
    elif k == "vmem" and "_store" in ins.op and ("x3" in ins.op or "x4" in ins.op):
        for r in ins.uses:
            if r[0] in ("v", "a"): st.m[("st_data", r)] = 0


def pad_hazards(prog, verbose=False):
    items = prog.items
    inserted = 0
    for _ in range(8):
        at_label = getattr(prog, "_lab", {})
        new_at_label = {}
        out = []
        st = HState(); st.sig = {}
        alive = True
        ins_cnt = 0
        for it in items:
            if isinstance(it, str):
                out.append(it); continue
            if isinstance(it, Label):
                src = [x for x in (at_label.get(it.name), new_at_label.get(it.name)) if x is not None]
                if not alive:
                    st = HState(); st.sig = {}
                    first = True
                for x in src:
                    st.merge(x)
                st.sig = {}
                alive = True
                out.append(it); continue
            r = need(it, st)
            if r > 0:
                nop = Ins("s_nop", (r - 1,), comment="hazard pad")
                out.append(nop); update(nop, st); ins_cnt += 1
            out.append(it)
            update(it, st)
            if it.kind == "branch":
                tgt = it.target
                cp = st.copy(); cp.sig = {}
                if tgt in new_at_label: new_at_label[tgt].merge(cp)
                else: new_at_label[tgt] = cp
                if it.op == "s_branch": alive = False
            if it.kind in ("end", "ret"): alive = False
        items = out
        inserted += ins_cnt
        same = True
        for k, v in new_at_label.items():
            old = at_label.get(k)
            if old is None or old.m != v.m: same = False
        prog._lab = new_at_label
        if ins_cnt == 0 and same:
            break
    prog.items = items
    if verbose: print("hazard nops inserted:", inserted)
    return inserted


def parse_wait(ins):
    vm = re.search(r"vmcnt\((\d+)\)", ins.mods); lg = re.search(r"lgkmcnt\((\d+)\)", ins.mods)
    return (int(vm.group(1)) if vm else None, int(lg.group(1)) if lg else None)


def check_trace(items, decide, max_steps=2000000, name=""):
    labels = {it.name: i for i, it in enumerate(items) if isinstance(it, Label)}
    pc = 0
    vmq, lgq = [], []
    visits = {}
    errs = []
    n = 0
    while pc < len(items):
        it = items[pc]; pc += 1
        if not isinstance(it, Ins): continue
        n += 1
        if n > max_steps: errs.append("trace too long"); break
        if it.kind == "wait":
            vm, lg = parse_wait(it)
            if vm is not None:
                while len(vmq) > vm: vmq.pop(0)
            if lg is not None:
                if any(e[2] == "smem" for e in lgq) and lg != 0:
                    errs.append(f"{name}: counted lgkmcnt with smem outstanding: {it.text()}")
                while len(lgq) > lg: lgq.pop(0)
            continue
        touched = set(it.uses) | set(it.defs)
        for q, qn in ((vmq, "vm"), (lgq, "lgkm")):
            for e in q:
                hit = touched & e[0]
                if hit and not (it.kind in ("ds", "vmem", "smem") and not (set(it.uses) & e[0]) and False):
                    errs.append(f"{name}: {it.text()} touches {sorted(hit)[:4]} with {qn} load in flight ({e[3]})")
        if it.ldsuse is not None:
            for e in vmq:
                if e[1] is not None and e[1] in it.ldsuse:
                    errs.append(f"{name}: {it.text()} reads LDS tag {e[1]} while DMA in flight")
        if it.kind == "vmem" and it.op not in ("buffer_wbl2", "buffer_inv"):
            vmq.append((set(it.defs), it.tag, "vmem", it.text()))
            if len(vmq) > 63: errs.append(f"{name}: more than 63 vm ops outstanding at {it.text()}")
        elif it.kind == "ds":
            lgq.append((set(it.defs), it.tag, "ds", it.text()))
        elif it.kind == "smem":
            lgq.append((set(it.defs), it.tag, "smem", it.text()))
        elif it.kind == "branch":
            key = id(it)
            visits[key] = visits.get(key, 0) + 1
            taken = True if it.op == "s_branch" else decide(it, visits[key])
            if taken: pc = labels[it.target]
        elif it.kind == "call":
            errs.append("call executed in trace")
        elif it.kind == "end":
            break
        if len(errs) > 20: break
    return n, errs


def interleave(primary, fill, ratio=None, lead=0):
    out = []
    np_, nf = len(primary), len(fill)
    if np_ == 0: return list(fill)
    fi = 0
    for i, p in enumerate(primary):
        out.append(p)
        want = ((i + 1) * nf) // np_
        while fi < want:
            out.append(fill[fi]); fi += 1
    out.extend(fill[fi:])
    return out


KD = """.section .rodata,"a"
.p2align 6
.amdhsa_kernel {name}
  .amdhsa_next_free_vgpr {vgpr}
  .amdhsa_next_free_sgpr {sgpr}
  .amdhsa_accum_offset {acc}
  .amdhsa_group_segment_fixed_size 0
  .amdhsa_kernarg_size 104
  .amdhsa_user_sgpr_count 2
  .amdhsa_user_sgpr_kernarg_segment_ptr 1
  .amdhsa_system_sgpr_workgroup_id_x 1
  .amdhsa_float_denorm_mode_32 3
.end_amdhsa_kernel
"""


def kernel_text(name, prog):
    return f".text\n.globl {name}\n.p2align 8\n.type {name},@function\n{name}:\n" + prog.text()
```

```python
import math
from asmlib import *

O_BRANCH = 8 * 32 * 20 * 1024
LDS_TOTAL = 163840
SCR = 131072
CSCALE = math.log2(math.e) / math.sqrt(128.0)


def f2u(x):
    import struct
    return struct.unpack("<I", struct.pack("<f", x))[0]


sWG, sW = S(2), S(3)
sX, sWQ, sK, sVv, sO = S(8, 4), S(12, 4), S(16, 4), S(20, 4), S(24, 4)
sC = S(28)
sRET = S(30, 2)
sROT, sBASE, sN, sOFF, sRING, sLOOP, sHEAD = S(32), S(33), S(34), S(35), S(37), S(38), S(39)
sT0, sT1, sT2, sT3 = S(40), S(41), S(42), S(43)
sK64, sKW = S(44), S(45)
sJ, sS, sB, sH0 = S(46), S(47), S(48), S(49)
sWS = S(50, 2)
sHD, sKG = S(52), S(53)
sTIME = S(54, 2)
sDBG = S(56, 2)


def O(t, dt): return V((t * 8 + dt) * 4, 4)
def Sb(par): return V(160 + 8 * par, 8)
def Pb(par): return V(176 + 4 * par, 4)
def MC(t): return V(184 + t)
vM1, vM2 = V(189), V(190)
def aK(s): return V(191 + s)
def aV(dt): return V(195 + dt)
def vKd(i): return V(203 + i)
def vVd(i): return V(207 + i)
vL16 = V(209)
vLane = V(210)
vT = V(211)
FREE = 212


def Q(s, t): return A((s * 5 + t) * 4, 4)
def Q2(s, t): return A(80 + (s * 5 + t) * 4, 4)
def KF(kt, s): return A(160 + (kt * 4 + s) * 4, 4)
def VF(dt): return A(192 + dt * 4, 4)
def LA(t): return A(224 + t * 4, 4)
ONES = A(244, 4)
SEL1 = A(248, 4)
SEL2 = A(252, 4)


class Cfg:
    def __init__(self, kind):
        self.kind = kind
        self.B = kind == "B"
        self.nslots = 4 if self.B else 8
        self.ipt = 8 if self.B else 4
        self.steps = 8 if self.B else 16
        if self.B:
            self.H = [24576, 57344, 90112, 122880, SCR, SCR + 8192]
        else:
            self.H = [49152, 57344, 114688, 122880, SCR, SCR + 8192]
        self.X = [SCR + 16384 + 5120 * i for i in range(3)]


def srd_from(p, dst, lo, hi, off_s, size):
    if off_s is not None:
        p("s_add_u32", dst[0], lo, off_s); p("s_addc_u32", dst[1], hi, 0)
        p("s_and_b32", dst[1], dst[1], "0xffff")
    else:
        p("s_mov_b32", dst[0], lo); p("s_and_b32", dst[1], hi, "0xffff")
    p("s_mov_b32", dst[2], size); p("s_mov_b32", dst[3], "0x20000")


STAMP = {"on": False}
def stamp(p, i):
    if STAMP["on"]:
        p("s_memrealtime", S(70 + 2 * i, 2))


def calc_off(p, c):
    if c.B:
        p("s_add_u32", sT0, sN, sROT); p("s_and_b32", sT0, sT0, 7); p("s_lshl_b32", sT0, sT0, 15)
        p("s_lshr_b32", sT1, sN, 3); p("s_lshl_b32", sT1, sT1, 18)
    else:
        p("s_add_u32", sT0, sN, sROT); p("s_and_b32", sT0, sT0, 15); p("s_lshl_b32", sT0, sT0, 14)
        p("s_lshr_b32", sT1, sN, 4); p("s_lshl_b32", sT1, sT1, 18)
    p("s_add_u32", sT0, sT0, sT1); p("s_add_u32", sOFF, sT0, sBASE); p("s_add_u32", sN, sN, 1)


def dma_tile(c, kind, slot, tag, pol="nt"):
    L = []
    srd = sK if kind == "K" else sVv
    for half in range(c.ipt // 4):
        L.append(mk("s_add_u32", M0, sRING, slot * 8192 + half * 4096))
        if half:
            L.append(mk("s_add_u32", sT2, sOFF, 4096)); so = sT2
        else:
            L.append(mk("s_nop", 0)); so = sOFF
        for i in range(4):
            vo = vKd(i) if kind == "K" else vVd(i & 1)
            L.append(mk("buffer_load_dwordx4", vo, srd, so, mods=f"offen offset:{i * 1024} {pol} lds", tag=tag))
    return L


def k_reads(slot, tag):
    L = []
    for s in range(4):
        for kt in range(2):
            i = mk("ds_read_b128", KF(kt, s), aK(s), mods=f"offset:{slot * 8192 + kt * 4096}")
            i.ldsuse = {tag}
            L.append(i)
    return L


def v_reads(slot, dt, tag):
    L = []
    for h in range(2):
        i = mk("ds_read_b64_tr_b16", VF(dt).sub(2 * h, 2), aV(dt), mods=f"offset:{slot * 8192 + h * 4096}")
        i.ldsuse = {tag}
        L.append(i)
    return L


MF = "v_mfma_f32_16x16x32_bf16"


def qk_mfmas(t, par):
    L = []
    for s in range(4):
        for kt in range(2):
            d = Sb(par).sub(4 * kt, 4)
            L.append(mk(MF, d, KF(kt, s), Q(s, t), 0 if s == 0 else d))
    return L


def pv_mfmas(t, par, first=False):
    L = []
    for dt in range(8):
        L.append(mk(MF, O(t, dt), VF(dt), Pb(par), 0 if first else O(t, dt)))
    L.append(mk(MF, LA(t), ONES, Pb(par), 0 if first else LA(t)))
    return L


def sm_valu(p, t, par, first, slow_sites):
    x = Sb(par)
    L = []
    if first:
        L.append(mk("v_max3_f32", vM1, x[0], x[1], x[2])); L.append(mk("v_max3_f32", vM2, x[3], x[4], x[5]))
        L.append(mk("v_max3_f32", vM1, vM1, x[6], x[7])); L.append(mk("v_max_f32", vM1, vM1, vM2))
        L.append(mk("v_mov_b32", vM2, vM1)); L.append(mk("v_permlane32_swap_b32", vM1, vM2)); L.append(mk("v_max_f32", vM1, vM1, vM2))
        L.append(mk("v_mov_b32", vM2, vM1)); L.append(mk("v_permlane16_swap_b32", vM1, vM2)); L.append(mk("v_max_f32", vM1, vM1, vM2))
        L.append(mk("v_mul_f32", MC(t), sC, vM1))
        for i in range(8): L.append(mk("v_fma_f32", x[i], x[i], sC, Neg(MC(t))))
    else:
        for i in range(8): L.append(mk("v_fma_f32", x[i], x[i], sC, Neg(MC(t))))
        L.append(mk("v_max3_f32", vM1, x[0], x[1], x[2])); L.append(mk("v_max3_f32", vM2, x[3], x[4], x[5]))
        L.append(mk("v_max3_f32", vM1, vM1, x[6], x[7])); L.append(mk("v_max_f32", vM1, vM1, vM2))
        L.append(mk("v_cmp_lt_f32", VCC, "0x41000000", vM1))
        stub = p.uid("stub"); back = p.uid("back")
        br = mk("s_cbranch_vccnz", stub)
        L.append(br); L.append(Label(back))
        slow_sites.append((stub, back, t, par))
    for i in range(8): L.append(mk("v_exp_f32", x[i], x[i]))
    for i in range(4): L.append(mk("v_cvt_pk_bf16_f32", Pb(par)[i], x[2 * i], x[2 * i + 1]))
    return L


def merge(mf, va, per=None):
    out = []
    n = len(mf)
    nv = len(va)
    vi = 0
    for i, g in enumerate(mf):
        out.extend(g)
        want = ((i + 1) * nv + n - 1) // n if per is None else min(nv, (i + 1) * per)
        while vi < want:
            out.append(va[vi]); vi += 1
    out.extend(va[vi:])
    return out


def emit_step(p, c, n_par, slotK_next, slotV, dmaV_slot, dmaK_slot, first, last, slow_sites, tagn, vm0=24, vm3=24, bar=False):
    for t in range(5):
        par = (n_par + t) & 1
        mf = []
        va = sm_valu(p, t, par, first, slow_sites)
        if t < 4:
            qk = qk_mfmas(t + 1, par ^ 1)
            if t == 3:
                pre = [mkwait(vm=vm3)]
                if bar or not c.B: pre.append(mk("s_barrier"))
                kr = k_reads(slotK_next, f"K{tagn + 1}")
                if not c.B:
                    pre += dma_tile(c, "V", dmaV_slot, f"V{tagn + 4}")
                mf.append(pre + [qk[0], kr[0]])
                for i in range(1, 8): mf.append([qk[i], kr[i]])
            else:
                for m in qk: mf.append([m])
        elif not last:
            qk = qk_mfmas(0, par ^ 1)
            pre = [mkwait(lgkm=0)]
            if c.B:
                tmp = Prog(); calc_off(tmp, c)
                pre += tmp.items + dma_tile(c, "K", dmaK_slot, f"K{tagn + 3}")
            mf.append(pre + [qk[0]])
            for m in qk[1:]: mf.append([m])
        else:
            pre = [mkwait(lgkm=0)]
            if c.B:
                tmp = Prog(); calc_off(tmp, c)
                pre += tmp.items + dma_tile(c, "K", dmaK_slot, f"K{tagn + 3}")
            mf.append(pre)
        if t == 0:
            pre = [mkwait(vm=vm0)]
            if bar and c.B: pre.append(mk("s_barrier"))
            if not c.B:
                pre.append(mk("s_barrier"))
                tmp = Prog(); calc_off(tmp, c)
                pre += tmp.items + dma_tile(c, "K", dmaK_slot, f"K{tagn + 4}")
            if first:
                mf.append(pre)
                for dt in range(8): mf.append(v_reads(slotV, dt, f"V{tagn}"))
            else:
                pv = pv_mfmas(4, par ^ 1)
                mf.append(pre + [pv[0]] + v_reads(slotV, 0, f"V{tagn}"))
                for dt in range(1, 8): mf.append([pv[dt]] + v_reads(slotV, dt, f"V{tagn}"))
                mf.append([pv[8]])
        else:
            pv = pv_mfmas(t - 1, par ^ 1, first=first)
            if t == 1:
                pre = [mkwait(lgkm=0)]
                if c.B: pre += dma_tile(c, "V", dmaV_slot, f"V{tagn + 2}")
                mf.append(pre + [pv[0]])
                for m in pv[1:]: mf.append([m])
            else:
                for m in pv: mf.append([m])
        p.add(merge(mf, va))


def emit_drain(p, c, n_par, first_is_only=False):
    par = (n_par + 4) & 1
    p.add(pv_mfmas(4, par))


def emit_slow(p, slow_sites):
    need = set()
    for stub, back, t, par in slow_sites:
        p.label(stub)
        p("s_call_b64", sRET, f"slow_{t}_{par}")
        p("s_branch", back)
        need.add((t, par))
    for t, par in sorted(need):
        x = Sb(par)
        p.label(f"slow_{t}_{par}")
        p.nop(16)
        p("v_mov_b32", vM2, vM1); p.nop(2); p("v_permlane32_swap_b32", vM1, vM2); p.nop(2); p("v_max_f32", vM1, vM1, vM2)
        p("v_mov_b32", vM2, vM1); p.nop(2); p("v_permlane16_swap_b32", vM1, vM2); p.nop(2); p("v_max_f32", vM1, vM1, vM2)
        p("v_max_f32", vM1, 0, vM1)
        p("v_add_f32", MC(t), MC(t), vM1)
        for i in range(8): p("v_sub_f32", x[i], x[i], vM1)
        p("v_sub_f32", vM2, 0, vM1); p("v_exp_f32", vM2, vM2); p.nop(2)
        for dt in range(8):
            for i in range(4): p("v_mul_f32", O(t, dt)[i], O(t, dt)[i], vM2)
        for i in range(4):
            p("v_accvgpr_read_b32", vM1, LA(t)[i]); p.nop(1); p("v_mul_f32", vM1, vM1, vM2); p.nop(1)
            p("v_accvgpr_write_b32", LA(t)[i], vM1)
        p.nop(8)
        p("s_setpc_b64", sRET)


def accQ(sl, half, t): return V(((sl * 2 + half) * 5 + t) * 4, 4)
def AF(buf, sl, half): return V(80 + buf * 16 + (sl * 2 + half) * 4, 4)
def BF(buf, t): return V(112 + buf * 20 + t * 4, 4)
def vWq(i): return V(152 + i)
vXd = V(156)
def aW(st, sl): return V(157 + st * 2 + sl)
vXr = V(163)
vQa, vQb, vQc = V(164), V(165), V(166)


def q_setup(p, c):
    H, X = c.H, c.X
    l = vLane
    p("v_lshrrev_b32", V(170), 5, l); p("v_and_b32", V(171), 31, l)
    for i in range(4):
        p("v_lshlrev_b32", V(172), 2, V(170))
        if i & 1: p("v_add_u32", V(172), 8, V(172))
        p("v_xor_b32", V(172), V(172), V(171)); p("v_lshlrev_b32", V(172), 4, V(172))
        p("v_lshlrev_b32", V(173), 13, V(170)); p("v_add_u32", V(172), V(172), V(173))
        p("v_add_u32", vWq(i), i * 15360, V(172))
    p("v_and_b32", V(170), 15, l); p("v_mul_u32_u24", V(170), 1152, V(170))
    p("v_lshrrev_b32", V(171), 4, l); p("v_lshlrev_b32", V(171), 4, V(171)); p("v_add_u32", vXd, V(170), V(171))


def q_setup2(p, c):
    H, X = c.H, c.X
    l = vLane
    p("v_lshrrev_b32", V(170), 4, l)
    p("v_bfe_u32", V(171), l, 2, 2)
    p("v_and_b32", V(172), 3, l)
    p("v_and_b32", V(173), 1, V(170)); p("v_lshlrev_b32", V(173), 3, V(173)); p("v_add_u32", V(173), V(173), V(171))
    p("v_lshlrev_b32", V(173), 9, V(173))
    p("v_lshrrev_b32", V(174), 1, V(170))
    for sl in range(2):
        p("s_lshl_b32", sT0, sW, 3); p("s_add_u32", sT0, sT0, 4 * sl)
        p("v_add_u32", V(175), sT0, V(172))
        p("v_lshlrev_b32", V(176), 2, V(171)); p("v_xor_b32", V(175), V(175), V(176))
        p("v_lshlrev_b32", V(175), 4, V(175)); p("v_add_u32", V(175), V(175), V(173))
        for st in range(3):
            d = H[2 * st + 1] - H[2 * st]
            p("s_mov_b32", sT0, d); p("v_mul_lo_u32", V(176), sT0, V(174))
            p("v_add_u32", V(176), H[2 * st], V(176)); p("v_add_u32", aW(st, sl), V(176), V(175))
    p("v_add_u32", vXr, X[0], vL16)
    for r in range(80): p("v_mov_b32", V(r), 0)


def kv_prefetch(p, c, pol="nt"):
    if c.B:
        p("s_sub_u32", sT3, sW, 2); p("s_lshl_b32", sT3, sT3, 1)
        seq = [("K", 0, 0), ("V", 0, 1), ("K", 1, 2)]
        for kind, N, slot in seq:
            if N == 1: p.wait(vm=47)
            p("s_add_u32", sT0, sROT, N); p("s_and_b32", sT0, sT0, 7); p("s_lshl_b32", sT0, sT0, 15)
            for tg in range(2):
                p("s_add_u32", sT1, sT3, tg)
                p("s_lshl_b32", sT2, sT1, 13); p("s_add_u32", S(58), sT0, sT2)
                p("s_lshl_b32", S(59), sT1, 15)
                for half in range(2):
                    p("s_add_u32", M0, S(59), slot * 8192 + half * 4096)
                    if half: p("s_add_u32", S(58), S(58), 4096)
                    else: p("s_nop", 0)
                    for i in range(4):
                        vo = vKd(i) if kind == "K" else vVd(i & 1)
                        p("buffer_load_dwordx4", vo, sK if kind == "K" else sVv, S(58), mods=f"offen offset:{i * 1024} {pol} lds", tag=f"P{kind}{N}")
    else:
        p("s_sub_u32", sT3, sW, 2)
        p("s_lshl_b32", S(59), sT3, 16)
        for N in range(3):
            if N == 2: p.wait(vm=47)
            p("s_add_u32", sT0, sROT, N); p("s_and_b32", sT0, sT0, 15); p("s_lshl_b32", sT0, sT0, 14)
            p("s_lshl_b32", sT1, sT3, 13); p("s_add_u32", sT0, sT0, sT1)
            for kind in ("K", "V"):
                slot = 2 * N + (kind == "V")
                for half in range(2):
                    p("s_add_u32", M0, S(59), slot * 8192 + half * 4096)
                    p("s_add_u32", S(58), sT0, half * 4096)
                    for i in range(4):
                        vo = vKd(i) if kind == "K" else vVd(i & 1)
                        p("buffer_load_dwordx4", vo, sK if kind == "K" else sVv, S(58), mods=f"offen offset:{i * 1024} {pol} lds", tag=f"P{kind}{N}")


def l2_prefetch(p, c, qpol):
    l = vLane
    p("s_bfe_u32", sT0, sS, "0x10003"); p("s_lshl_b32", sT0, sT0, 1); p("s_add_u32", sT0, sT0, sW); p("s_sub_u32", sT0, sT0, 2)
    p("s_mul_i32", sT0, sT0, 23040); p("v_lshlrev_b32", V(169), 7, l)
    for i in range(3):
        d = p("buffer_load_dword", V(229), V(169), sX, sT0, mods=f"offen {qpol}"); d.defs = []
        p("s_add_u32", sT0, sT0, 8192)
    p("v_lshrrev_b32", V(170), 5, l); p("v_lshlrev_b32", V(170), 13, V(170))
    p("v_and_b32", V(169), 31, l); p("v_lshlrev_b32", V(169), 4, V(169)); p("v_add_u32", V(170), V(170), V(169))
    p("s_lshl_b32", sT0, sB, 2); p("s_sub_u32", sT1, sW, 2); p("s_lshl_b32", sT1, sT1, 1); p("s_add_u32", sT0, sT0, sT1); p("s_lshl_b32", sT0, sT0, 13)
    for k in range(18):
        d = p("buffer_load_dwordx4", V(228, 4) if False else V(232, 4), V(170), sWQ, sT0, mods=f"offen {qpol}"); d.defs = []
        p("s_add_u32", sT0, sT0, 262144)


def q_phase(p, c, opt):
    H, X = c.H, c.X
    qpol = opt.get("qpol", "nt")

    def stage_dma(role, st, tag):
        L = []
        for G in ((0, 1) if role == 0 else (2, 3)):
            g = [mk("s_mov_b32", M0, H[2 * st + (G >> 1)] + (G & 1) * 4096), mk("s_add_u32", sT0, sKW, G * 65536)]
            for i in range(4):
                g.append(mk("buffer_load_dwordx4", vWq(i), sWQ, sT0, mods=f"offen offset:{i * 1024} {qpol} lds", tag=tag))
                L.append(g); g = []
        ts = (0, 1, 2) if role == 0 else (3, 4)
        g = [mk("s_mov_b32", M0, X[st] + ts[0] * 1024)]
        for k, t in enumerate(ts):
            g.append(mk("s_add_u32", sT0, sK64, t * 18432 - k * 1024))
            g.append(mk("buffer_load_dwordx4", vXd, sX, sT0, mods=f"offen offset:{k * 1024} {qpol} lds", tag=tag))
            L.append(g); g = []
        L[-1] += [mk("s_add_u32", sK64, sK64, 64), mk("s_add_u32", sKW, sKW, 262144)]
        return L

    def reads(k):
        st, buf = k % 3, k & 1
        L = []
        for sl in range(2):
            for half in range(2):
                for kk in range(2):
                    i = mk("ds_read_b64_tr_b16", AF(buf, sl, half).sub(2 * kk, 2), aW(st, sl), mods=f"offset:{kk * 2048 + half * 8}")
                    i.ldsuse = {f"Q{k}"}; L.append([i])
        for t in range(5):
            i = mk("ds_read_b128", BF(buf, t), vXr, mods=f"offset:{st * 5120 + t * 1024}")
            i.ldsuse = {f"Q{k}"}; L.append([i])
        return L

    def mfmas(k):
        buf = k & 1
        return [mk(MF, accQ(sl, half, t), AF(buf, sl, half), BF(buf, t), accQ(sl, half, t))
                for t in range(5) for sl in range(2) for half in range(2)]

    def kstep(role, k, with_mfma=True):
        if role < 2: p.wait(vm=11 if role == 0 else 10)
        if STAMP["on"] and STAMP.get("q"):
            p("s_memrealtime", S(90, 2)); p.wait(lgkm=0); p("v_writelane_b32", V(250), S(90), k)
        p("s_barrier")
        fill = reads(k) + (stage_dma(role, (k + 2) % 3, f"Q{k + 2}") if role < 2 else [])
        if with_mfma:
            m = mfmas(k - 1)
            n, nf, fi = len(m), len(fill), 0
            for i, x in enumerate(m):
                want = ((i + 1) * nf + n - 1) // n
                while fi < want:
                    p.add(fill[fi]); fi += 1
                p.add(x)
        else:
            for g in fill: p.add(g)
        p.wait(lgkm=0)

    done = p.uid("qdone"); r1 = p.uid("qr1"); r2 = p.uid("qr2")
    q_setup(p, c)
    p("s_mov_b32", sK64, 0); p("s_mov_b32", sKW, 0)
    p("s_cmp_eq_u32", sW, 0); p("s_cbranch_scc0", r1).tag = "role0"
    for role in range(3):
        if role == 1:
            p.label(r1); p("s_cmp_eq_u32", sW, 1); p("s_cbranch_scc0", r2).tag = "role1"
        if role == 2: p.label(r2)
        if role < 2:
            for g in stage_dma(role, 0, "Q0") + stage_dma(role, 1, "Q1"): p.add(g)
            att_setup(p, c)
        else:
            if opt.get("l2pf", True): l2_prefetch(p, c, qpol)
            att_setup(p, c)
            if opt.get("kvpf", True): kv_prefetch(p, c)
        q_setup2(p, c)
        kstep(role, 0, with_mfma=False)
        lab = p.uid("qloop")
        if STAMP["on"] and STAMP.get("q"):
            for k in range(1, 19): kstep(role, k)
        else:
            p("s_mov_b32", sLOOP, 0)
            p.label(lab)
            for k in range(1, 7): kstep(role, k)
            p("s_add_u32", sLOOP, sLOOP, 1); p("s_cmp_lt_u32", sLOOP, 3)
            p("s_cbranch_scc1", lab).tag = ("loop", 3)
        if role < 2:
            p.wait(vm=0)
            p("s_branch", done)
    p.label(done)
    p("s_barrier")
    pk = V(80, 40)
    for sl in range(2):
        for t in range(5):
            d = pk.sub((sl * 5 + t) * 4, 4)
            for half in range(2):
                a = accQ(sl, half, t)
                p("v_cvt_pk_bf16_f32", d[2 * half], a[0], a[1]); p("v_cvt_pk_bf16_f32", d[2 * half + 1], a[2], a[3])
    if c.B:
        p("s_mul_i32", sT0, sW, 32768); p("s_add_u32", sT0, sT0, 24576)
    else:
        p("s_lshr_b32", sT0, sW, 1); p("s_lshl_b32", sT0, sT0, 16); p("s_and_b32", sT1, sW, 1); p("s_lshl_b32", sT1, sT1, 13)
        p("s_add_u32", sT0, sT0, sT1); p("s_add_u32", sT0, sT0, 49152)
    p("v_add_u32", vQa, sT0, vL16)
    p("s_lshl_b32", sT1, sW, 11); p("s_add_u32", sT1, sT1, SCR); p("v_add_u32", vQb, sT1, vL16)
    for i in range(10):
        if i < 8: p("ds_write_b128", vQa, pk.sub(4 * i, 4), mods=f"offset:{i * 1024}")
        else: p("ds_write_b128", vQb, pk.sub(4 * i, 4), mods=f"offset:{(i - 8) * 1024}")
    p.wait(lgkm=0); p("s_barrier")

    def rd(dst, wsrc, i, baseZ, offZ, baseY, offY):
        if i < 8: p("ds_read_b128", dst, baseZ, mods=f"offset:{offZ + i * 1024}")
        else: p("ds_read_b128", dst, baseY, mods=f"offset:{offY + (i - 8) * 1024}")
    if c.B:
        p("v_add_u32", vQa, 65536, vL16); p("v_add_u32", vQb, SCR, vL16)
        for wsrc in range(4):
            base = vL16 if wsrc < 2 else vQa
            offZ = (wsrc & 1) * 32768 + 24576
            for i in range(10):
                s, t = 2 * (wsrc & 1) + i // 5, i % 5
                rd(Q(s, t) if wsrc < 2 else Q2(s, t), wsrc, i, base, offZ, vQb, wsrc * 2048)
    else:
        p("s_lshl_b32", sT0, sHD, 16); p("v_add_u32", vQa, sT0, vL16)
        p("s_lshl_b32", sT0, sHD, 12); p("s_add_u32", sT0, sT0, SCR); p("v_add_u32", vQb, sT0, vL16)
        for e in range(2):
            for i in range(10):
                s, t = 2 * e + i // 5, i % 5
                rd(Q(s, t), e, i, vQa, 49152 + e * 8192, vQb, e * 2048)
    p.wait(lgkm=0)
    p("s_barrier")


def att_setup(p, c):
    l = vLane
    F = FREE
    p("v_lshrrev_b32", V(F), 4, l); p("v_and_b32", V(F + 1), 15, l)
    p("v_xor_b32", V(F + 2), V(F), V(F + 1)); p("v_lshlrev_b32", V(F + 3), 8, V(F))
    for i in range(4):
        p("v_xor_b32", V(F + 4), 4 * i, V(F + 2)); p("v_lshlrev_b32", V(F + 4), 4, V(F + 4)); p("v_add_u32", vKd(i), V(F + 3), V(F + 4))
    for i in range(2):
        p("v_lshlrev_b32", V(F + 4), 1, V(F)); p("v_add_u32", V(F + 4), 8 * i, V(F + 4)); p("v_xor_b32", V(F + 4), V(F + 4), V(F + 1))
        p("v_lshlrev_b32", V(F + 4), 4, V(F + 4)); p("v_add_u32", vVd(i), V(F + 3), V(F + 4))


def att_setup2(p, c):
    l = vLane
    F = FREE
    p("v_lshrrev_b32", V(F), 4, l); p("v_and_b32", V(F + 1), 15, l)
    if c.B: p("s_lshl_b32", sT3, sW, 15)
    else: p("s_lshl_b32", sT3, sKG, 16)
    p("v_lshlrev_b32", V(F + 3), 8, V(F + 1)); p("v_add_u32", V(F + 3), sT3, V(F + 3))
    for s in range(4):
        p("v_add_u32", V(F + 4), 4 * s, V(F)); p("v_xor_b32", V(F + 4), V(F + 4), V(F + 1))
        p("v_lshlrev_b32", V(F + 4), 4, V(F + 4)); p("v_add_u32", aK(s), V(F + 3), V(F + 4))
    p("v_lshrrev_b32", V(F + 2), 2, l); p("v_lshlrev_b32", V(F + 3), 8, V(F + 2)); p("v_add_u32", V(F + 3), sT3, V(F + 3))
    p("v_and_b32", V(F + 4), 3, l); p("v_lshlrev_b32", V(F + 4), 3, V(F + 4)); p("v_add_u32", V(F + 3), V(F + 3), V(F + 4))
    p("v_and_b32", V(F + 2), 7, V(F + 2))
    for dt in range(8):
        p("v_xor_b32", V(F + 4), dt, V(F + 2)); p("v_lshlrev_b32", V(F + 4), 5, V(F + 4)); p("v_add_u32", aV(dt), V(F + 3), V(F + 4))
    p("v_mov_b32", V(F + 4), "0x3f803f80")
    for i in range(4): p("v_accvgpr_write_b32", ONES[i], V(F + 4))
    p("v_lshrrev_b32", V(F + 2), 2, V(F + 1))
    p("v_and_b32", V(F + 3), 3, l)
    p("v_cmp_eq_u32", VCC, V(F + 2), V(F))
    p("v_cndmask_b32", V(F + 5), 7, V(F + 3))
    p("v_mov_b32", V(F + 6), 0); p("v_mov_b32", V(F + 7), 0)
    p("v_mov_b32", V(F + 8), "0x3f80"); p("v_mov_b32", V(F + 9), "0x3f800000")
    p("v_cmp_eq_u32", VCC, 0, V(F + 5)); p("v_cndmask_b32", V(F + 6), V(F + 6), V(F + 8))
    p("v_cmp_eq_u32", VCC, 1, V(F + 5)); p("v_cndmask_b32", V(F + 6), V(F + 6), V(F + 9))
    p("v_cmp_eq_u32", VCC, 2, V(F + 5)); p("v_cndmask_b32", V(F + 7), V(F + 7), V(F + 8))
    p("v_cmp_eq_u32", VCC, 3, V(F + 5)); p("v_cndmask_b32", V(F + 7), V(F + 7), V(F + 9))
    p("v_mov_b32", V(F + 8), 0)
    p("v_accvgpr_write_b32", SEL1[0], V(F + 6)); p("v_accvgpr_write_b32", SEL1[1], V(F + 7))
    p("v_accvgpr_write_b32", SEL1[2], V(F + 8)); p("v_accvgpr_write_b32", SEL1[3], V(F + 8))
    p("v_accvgpr_write_b32", SEL2[0], V(F + 8)); p("v_accvgpr_write_b32", SEL2[1], V(F + 8))
    p("v_accvgpr_write_b32", SEL2[2], V(F + 6)); p("v_accvgpr_write_b32", SEL2[3], V(F + 7))


def epilogue_a(p, c):
    F = FREE
    stats = SCR
    vl = [V(F + t) for t in range(5)]
    for t in range(5): p("v_accvgpr_read_b32", vl[t], LA(t)[0])
    p("v_and_b32", vT, 15, vLane); p("v_lshlrev_b32", vT, 3, vT)
    p("s_mul_i32", sT0, sW, 640); p("s_add_u32", sT0, sT0, stats); p("v_add_u32", vM1, sT0, vT)
    for t in range(5):
        p("v_mov_b32", V(F + 6 + 2 * t), MC(t)); p("v_mov_b32", V(F + 7 + 2 * t), vl[t])
        p("ds_write_b64", vM1, V(F + 6 + 2 * t, 2), mods=f"offset:{t * 128}")
    npeer = 4 if c.B else 2
    if c.B:
        p("v_add_u32", vM2, stats, vT)
    else:
        p("s_mul_i32", sT0, sHD, 1280); p("s_add_u32", sT0, sT0, stats); p("v_add_u32", vM2, sT0, vT)
    p.wait(lgkm=0); p("s_barrier")
    st = lambda w, t: V(F + 4 + (w * 5 + t) * 2, 2)
    for w in range(npeer):
        for t in range(5):
            p("ds_read_b64", st(w, t), vM2, mods=f"offset:{w * 640 + t * 128}")
        if w == 1: p.wait(lgkm=0)
    p.wait(lgkm=0)
    if c.B: p("s_barrier")
    x = Sb(0); y = Sb(1)
    for t in range(5):
        p("v_max_f32", vM2, st(0, t)[0], st(1, t)[0])
        if npeer == 4: p("v_max3_f32", vM2, vM2, st(2, t)[0], st(3, t)[0])
        for w in range(npeer): p("v_sub_f32", x[w], st(w, t)[0], vM2)
        p("v_sub_f32", x[4], MC(t), vM2)
        for w in range(npeer): p("v_exp_f32", x[w], x[w])
        p("v_exp_f32", x[4], x[4])
        p("v_mul_f32", x[5], x[0], st(0, t)[1])
        for w in range(1, npeer): p("v_fma_f32", x[5], x[w], st(w, t)[1], x[5])
        p("v_rcp_f32", x[5], x[5])
        p("v_mul_f32", V(F + 2 * t) if False else y[t], x[4], x[5])
    for t in range(5):
        p("v_mov_b32", V(F), y[t])
        for s in range(4):
            a, b = O(t, 2 * s), O(t, 2 * s + 1)
            for r in (a.sub(0, 2), a.sub(2, 2), b.sub(0, 2), b.sub(2, 2)):
                p("v_pk_mul_f32", r, r, V(F, 2), mods="op_sel_hi:[1,0]")
            p("v_cvt_pk_bf16_f32", a[0], a[0], a[1]); p("v_cvt_pk_bf16_f32", a[1], a[2], a[3])
            p("v_cvt_pk_bf16_f32", a[2], b[0], b[1]); p("v_cvt_pk_bf16_f32", a[3], b[2], b[3])


def epilogue_b(p, c, rounds, xbase, sHead, opol=""):
    F = FREE
    npeer = 4 if c.B else 2
    vWr, vRd, vSt = V(F + 2), V(F + 3), V(F + 4)
    vWr2, vRd2 = V(F + 5), V(F + 6)
    p("s_lshl_b32", sT0, sW, 10); p("s_add_u32", sT0, sT0, xbase); p("v_add_u32", vWr, sT0, vL16)
    if c.B:
        p("s_lshl_b32", sT0, sW, 12); p("s_add_u32", sT0, sT0, xbase); p("v_add_u32", vRd, sT0, vL16)
        finals = [None]
        p("s_mul_i32", sT0, sW, 5120)
        p("s_mul_i32", sT1, sHead, 20480); p("s_add_u32", sT0, sT0, sT1)
    else:
        p("s_lshl_b32", sT0, sKG, 13); p("s_lshl_b32", sT1, sHD, 11); p("s_add_u32", sT0, sT0, sT1)
        p("s_add_u32", sT0, sT0, xbase); p("v_add_u32", vRd, sT0, vL16)
        finals = [0, 1]
        p("s_mul_i32", sT0, sKG, 10240); p("s_mul_i32", sT1, sHD, 20480); p("s_add_u32", sT0, sT0, sT1)
    p("v_add_u32", vSt, sT0, vL16)
    p("v_add_u32", vWr2, 65536, vWr); p("v_add_u32", vRd2, 65536, vRd)
    src = lambda k, w: V(F + 8 + (k & 1) * 16 + 4 * w, 4)
    D1, D2 = Sb(0).sub(0, 4), Sb(0).sub(4, 4)
    E1, E2 = Sb(1).sub(0, 4), Sb(1).sub(4, 4)
    res = lambda k: Pb(k & 1)
    cnt = 0
    for ri, rts in enumerate(rounds):
        if ri: p("s_barrier")
        for ti, t in enumerate(rts):
            for s in range(4):
                off = ti * 16384 + s * 4096
                p("ds_write_b128", vWr if off < 65536 else vWr2, O(t, 2 * s), mods=f"offset:{off % 65536}")
        p.wait(lgkm=0); p("s_barrier")
        jobs = [(ti, t, f) for ti, t in enumerate(rts) for f in finals]

        def rd(k, job):
            ti, t, f = job
            for w in range(npeer):
                off = ti * 16384 + (0 if f is None else f * 4096) + w * 1024
                p("ds_read_b128", src(k, w), vRd if off < 65536 else vRd2, mods=f"offset:{off % 65536}")
        rd(cnt, jobs[0])
        for ji, job in enumerate(jobs):
            k = cnt + ji
            if ji + 1 < len(jobs):
                rd(k + 1, jobs[ji + 1]); p.wait(lgkm=npeer)
            else:
                p.wait(lgkm=0)
            d1, d2 = (D1, D2) if k & 1 == 0 else (E1, E2)
            for w in range(npeer):
                p(MF, d1, SEL1, src(k, w), 0 if w == 0 else d1)
                p(MF, d2, SEL2, src(k, w), 0 if w == 0 else d2)
            ti, t, f = job
            r = res(k)
            p("v_cvt_pk_bf16_f32", r[0], d1[0], d1[1]); p("v_cvt_pk_bf16_f32", r[1], d1[2], d1[3])
            p("v_cvt_pk_bf16_f32", r[2], d2[0], d2[1]); p("v_cvt_pk_bf16_f32", r[3], d2[2], d2[3])
            off = t * 1024 + (0 if f is None else f * 5120)
            if off > 4095:
                p("s_mov_b32", sT1, off)
                p("buffer_store_dwordx4", r, vSt, sO, sT1, mods=f"offen {opol}")
            else:
                p("buffer_store_dwordx4", r, vSt, sO, 0, mods=f"offen offset:{off} {opol}")
        cnt += len(jobs)


def attention_path(p, c, slow_sites, opt):
    L = c.kind
    l = vLane
    base = 40 if c.B else 0
    p("s_load_dwordx4", S(60, 4), S(0, 2), base)
    p("s_load_dwordx4", S(64, 4), S(0, 2), base + 16)
    p("s_load_dwordx2", sWS, S(0, 2), 96)
    p.wait(lgkm=0)
    p("s_mul_i32", sT0, sB, 92160); srd_from(p, sX, S(60), S(61), sT0, 92160)
    p("s_lshl_b32", sT0, sH0, 8); srd_from(p, sWQ, S(66), S(67), sT0, 0)
    p("s_sub_u32", sWQ[2], 4718592, sT0)
    if c.B:
        p("s_lshl_b32", sT0, sB, 5); p("s_add_u32", sT0, sT0, sH0); p("s_lshl_b32", sT0, sT0, 18); ksz = 524288
    else:
        p("s_lshl_b32", sT0, sB, 4); p("s_lshr_b32", sT1, sH0, 1); p("s_add_u32", sT0, sT0, sT1); p("s_lshl_b32", sT0, sT0, 18); ksz = 262144
    srd_from(p, sK, S(62), S(63), sT0, ksz)
    srd_from(p, sVv, S(64), S(65), sT0, ksz)
    p("s_lshl_b32", sT0, sB, 5); p("s_add_u32", sT0, sT0, sH0); p("s_mul_i32", sT0, sT0, 20480)
    if c.B: p("s_add_u32", sT0, sT0, O_BRANCH)
    srd_from(p, sO, sWS[0], sWS[1], sT0, 40960)
    p("s_lshr_b32", sHD, sW, 1); p("s_and_b32", sKG, sW, 1)
    p("s_mov_b32", sC, hex(f2u(CSCALE)))
    p("s_add_u32", sROT, sS, sJ)
    if c.B:
        p("s_lshl_b32", sBASE, sW, 13); p("s_lshl_b32", sRING, sW, 15)
    else:
        p("s_lshl_b32", sBASE, sKG, 13); p("s_lshl_b32", sT0, sHD, 12); p("s_add_u32", sBASE, sBASE, sT0)
        p("s_lshl_b32", sRING, sKG, 16); p("s_add_u32", sRING, sRING, sT0)
    p("s_mov_b32", sN, 0)

    q_phase(p, c, opt)
    stamp(p, 1)
    p.wait(vm=48)
    if STAMP["on"] and STAMP.get("q"):
        p("s_lshl_b32", sT0, sWG, 2); p("s_add_u32", sT0, sT0, sW); p("s_lshl_b32", sT0, sT0, 8); p("s_add_u32", sT0, sT0, 17 << 20)
        p("v_lshlrev_b32", V(251), 2, vLane); p("v_add_u32", V(251), sT0, V(251))
        p("global_store_dword", V(251), V(250), sWS)
        p.wait(vm=0)
    opol = opt.get("opol", "")
    if not opt.get("kvpf", True):
        raise NotImplementedError
    if c.B:
        p("s_mov_b32", sN, 1); calc_off(p, c); p.add(dma_tile(c, "V", 3, "V1"))
        att_setup2(p, c)
        p.wait(vm=40); p("s_barrier")
    else:
        p("s_mov_b32", sN, 3); calc_off(p, c); p.add(dma_tile(c, "K", 6, "K3")); p.add(dma_tile(c, "V", 7, "V3"))
        att_setup2(p, c)
        p.wait(vm=48); p("s_barrier")
    p.add(k_reads(0, "PK0"))
    p.wait(lgkm=0)
    if c.B:
        calc_off(p, c); p.add(dma_tile(c, "K", 0, "K2"))

    def args(n):
        ks = (2 * n + 2) % c.nslots; vs = (2 * n + 1) % c.nslots
        if c.B: dv, dk = vs, ks
        else: dv, dk = vs, (2 * n) % c.nslots
        return (n * 5) & 1, ks, vs, dv, dk

    def zero_t4():
        for dt in range(8):
            for i in range(4): p("v_mov_b32", O(4, dt)[i], 0)
        p("v_mov_b32", vM1, 0)
        for i in range(4): p("v_accvgpr_write_b32", LA(4)[i], vM1)

    if c.B:
        p("s_mov_b32", sHEAD, 0)
        stamp(p, 2)
        hl = p.uid("head")
        p.label(hl)
        zero_t4()
        p.add(qk_mfmas(0, 0))
        emit_step(p, c, *args(0), True, False, slow_sites, 0, vm0=24, vm3=24, bar=True)
        lab = p.uid("loop")
        p("s_mov_b32", sLOOP, 0)
        p.label(lab)
        for u in range(2):
            emit_step(p, c, *args(1 + u), False, False, slow_sites, 1 + u)
        p("s_add_u32", sLOOP, sLOOP, 1); p("s_cmp_lt_u32", sLOOP, 3)
        p("s_cbranch_scc1", lab).tag = ("loop", 3)
        emit_step(p, c, *args(7), False, True, slow_sites, 7)
        emit_drain(p, c, (7 * 5) & 1)
        fin = p.uid("fin")
        if STAMP["on"]:
            p("s_cmp_eq_u32", sHEAD, 1)
            p("s_cbranch_scc0", fin + "a").tag = ("headsel", 0)
            stamp(p, 5)
            p("s_branch", fin + "b")
            p.label(fin + "a")
            stamp(p, 3)
            p.label(fin + "b")
        epilogue_a(p, c)
        p("s_cmp_eq_u32", sHEAD, 1)
        p("s_cbranch_scc1", fin).tag = ("headsel", 1)
        epilogue_b(p, c, [[0, 1], [2, 3], [4]], SCR, sHEAD, opol)
        for s in range(4):
            for t in range(5):
                for i in range(4): p("v_accvgpr_mov_b32", Q(s, t)[i], Q2(s, t)[i])
        p("s_mov_b32", sHEAD, 1)
        p("s_barrier")
        stamp(p, 4)
        p("s_branch", hl)
        p.label(fin)
        p.wait(vm=0); p("s_barrier")
        epilogue_b(p, c, [[0, 1, 2, 3, 4]], 0, sHEAD, opol)
    else:
        zero_t4()
        p.add(qk_mfmas(0, 0))
        stamp(p, 2)
        emit_step(p, c, *args(0), True, False, slow_sites, 0, vm0=40, vm3=36)
        emit_step(p, c, *args(1), False, False, slow_sites, 1, vm0=32, vm3=28)
        lab = p.uid("loop")
        p("s_mov_b32", sLOOP, 0)
        p.label(lab)
        for u in range(4):
            emit_step(p, c, *args(2 + u), False, False, slow_sites, 2 + u)
        p("s_add_u32", sLOOP, sLOOP, 1); p("s_cmp_lt_u32", sLOOP, 3)
        p("s_cbranch_scc1", lab).tag = ("loop", 3)
        emit_step(p, c, *args(14), False, False, slow_sites, 14)
        emit_step(p, c, *args(15), False, True, slow_sites, 15)
        emit_drain(p, c, (15 * 5) & 1)
        stamp(p, 3); stamp(p, 4); stamp(p, 5)
        epilogue_a(p, c)
        p.wait(vm=0); p("s_barrier")
        epilogue_b(p, c, [[0, 1, 2, 3, 4]], 0, 0, opol)


def gen_att_kernel(name, opt=None):
    opt = opt or {}
    p = Prog()
    slowB, slowA = [], []
    p("s_cmp_ge_u32", sWG, 256); p("s_cbranch_scc1", "att_end")
    STAMP["on"] = bool(opt.get("stamp")); STAMP["q"] = opt.get("qstamp")
    stamp(p, 0)
    if STAMP["on"]: p("s_memtime", S(86, 2))
    p("v_lshrrev_b32", V(1), 6, V(0)); p("v_and_b32", vLane, 63, V(0))
    p("v_readfirstlane_b32", sW, V(1))
    p("v_lshlrev_b32", vL16, 4, vLane)
    p("s_and_b32", sJ, sWG, 7); p("s_lshr_b32", sS, sWG, 3); p("s_and_b32", sB, sS, 7)
    p("s_bfe_u32", sT0, sS, "0x10003"); p("s_lshl_b32", sT0, sT0, 1); p("s_lshl_b32", sH0, sJ, 2); p("s_add_u32", sH0, sH0, sT0)
    p("s_cmp_ge_u32", sS, 16); p("s_cbranch_scc1", "att_A").tag = "isA"
    cB, cA = Cfg("B"), Cfg("A")
    only = opt.get("only")
    if only != "A": attention_path(p, cB, slowB, opt)
    p("s_branch", "att_fin")
    p.label("att_A")
    if only != "B": attention_path(p, cA, slowA, opt)
    p.label("att_fin")
    if opt.get("stamp"):
        p.wait(vm=0)
        stamp(p, 6); p("s_memtime", S(88, 2)); p("s_load_dwordx2", sWS, S(0, 2), 96); p.wait(lgkm=0)
        p("s_sub_u32", S(84), S(88), S(86)); p("s_mov_b32", S(85), 0)
        p("s_lshl_b32", sT0, sWG, 2); p("s_add_u32", sT0, sT0, sW); p("s_lshl_b32", sT0, sT0, 6); p("s_add_u32", sT0, sT0, 16 << 20)
        p("v_mov_b32", V(4), sT0)
        for i in range(16): p("v_mov_b32", V(8 + i), S(70 + i))
        p("v_cmp_eq_u32", VCC, 0, vL16); p("s_and_saveexec_b64", S(62, 2), VCC); p("s_cbranch_execz", "att_end")
        for i in range(0, 16, 4):
            p("global_store_dwordx4", V(4), V(8 + i, 4), sWS, mods=f"offset:{i * 4}")
    p.label("att_end")
    p("s_endpgm")
    emit_slow(p, slowB + slowA)
    pad_hazards(p)
    for isA in (False, True):
        for w in range(4):
            def decide(ins, visit):
                tg = ins.tag
                if tg == "isA": return isA
                if tg == "role0": return w != 0
                if tg == "role1": return w != 1
                if isinstance(tg, tuple) and tg[0] == "loop": return visit % tg[1] != 0
                if isinstance(tg, tuple) and tg[0] == "headsel":
                    return (visit == 1) if tg[1] == 0 else (visit == 2)
                return False
            n, errs = check_trace(p.items, decide, name=f"{'A' if isA else 'B'}w{w}")
            for e in errs[:10]: print("TRACE:", e)
    return p, LDS_TOTAL


if __name__ == "__main__":
    import build, sys
    name = "att_kernel"
    import json
    opt = dict(stamp=True)
    if len(sys.argv) > 1: opt.update(json.loads(sys.argv[1]))
    p, lds = gen_att_kernel(name, opt)
    txt = f"; @launch kernel={name} grid=(256,1,1) block=(256,1,1) lds={lds}\n" + '.amdgcn_target "amdgcn-amd-amdhsa--gfx950"\n'
    txt += kernel_text(name, p) + KD.format(name=name, vgpr=512, sgpr=102, acc=256)
    open("att.s", "w").write(txt)
    print(build.build("att.s"), len(txt), "instructions:", sum(1 for i in p.items if isinstance(i, Ins)))
```

```python
from asmlib import *

O_BRANCH = 8*32*20*1024
WO_BYTES = 4096*576*2
OUT_BYTES = 8*80*1152*2

def srd(p, dst, lo, hi, size):
    p("s_mov_b32", S(dst), lo); p("s_and_b32", S(dst+1), hi, "0xffff")
    p("s_mov_b32", S(dst+2), size); p("s_mov_b32", S(dst+3), "0x20000")

def gen_op_kernel(name, D=8, opol="", wpol=""):
    p = Prog()
    L = name.replace("_kernel", "")
    p("s_cmp_ge_u32", S(2), 240); p("s_cbranch_scc1", f"{L}_end")
    p("s_load_dwordx2", S(4,2), S(0,2), 32)
    p("s_load_dwordx2", S(6,2), S(0,2), 72)
    p("s_load_dwordx2", S(8,2), S(0,2), 80)
    p("s_load_dwordx2", S(10,2), S(0,2), 96)
    p("v_lshrrev_b32", V(1), 6, V(0)); p("v_and_b32", V(0), 63, V(0))
    p("v_readfirstlane_b32", S(3), V(1))
    p("s_and_b32", S(12), S(2), 7); p("s_lshr_b32", S(13), S(2), 3)
    p("s_lshr_b32", S(14), S(12), 2)
    p("s_bfe_u32", S(15), S(12), "0x10001")
    p("s_and_b32", S(16), S(12), 1)
    p("s_mul_i32", S(17), S(13), 43); p("s_lshr_b32", S(17), S(17), 8)
    p("s_mul_i32", S(18), S(17), 6); p("s_sub_u32", S(18), S(13), S(18))
    p("s_mul_i32", S(15), S(15), 5); p("s_add_u32", S(17), S(17), S(15))
    p("s_mul_i32", S(16), S(16), 6); p("s_add_u32", S(18), S(18), S(16))
    p.wait(lgkm=0)
    p("s_cmp_eq_u32", S(14), 0)
    p("s_cselect_b32", S(20), S(4), S(6)); p("s_cselect_b32", S(21), S(5), S(7))
    p("s_and_b32", S(21), S(21), "0xffff"); p("s_mov_b32", S(22), WO_BYTES); p("s_mov_b32", S(23), "0x20000")
    srd(p, 24, S(10), S(11), 2*O_BRANCH)
    srd(p, 28, S(8), S(9), OUT_BYTES)
    vL16, vA, vT = V(2), V(3), V(4)
    vW = [V(5), V(6), V(7)]
    vO = [V(8), V(9), V(10), V(11)]
    p("v_lshlrev_b32", vL16, 4, V(0))
    for pp in range(3):
        p("v_add_u32", vT, 64*pp, V(0))
        p("v_mul_u32_u24", V(12), 171, vT); p("v_lshrrev_b32", V(12), 10, V(12))
        p("v_mul_u32_u24", V(13), 6, V(12)); p("v_sub_u32", V(13), vT, V(13))
        p("v_mul_u32_u24", V(12), 1152, V(12)); p("v_lshlrev_b32", V(13), 4, V(13))
        p("v_add_u32", vW[pp], V(12), V(13))
        if pp: p("v_subrev_u32", vW[pp], 1024*pp, vW[pp])
    for u in range(4):
        p("s_lshl_b32", S(32), S(17), 2); p("s_add_u32", S(32), S(32), u)
        p("s_mul_i32", S(33), S(32), 52); p("s_lshr_b32", S(33), S(33), 8)
        p("s_mul_i32", S(34), S(33), 5); p("s_sub_u32", S(34), S(32), S(34))
        p("s_mul_i32", S(33), S(33), 655360); p("s_lshl_b32", S(34), S(34), 10); p("s_add_u32", S(33), S(33), S(34))
        p("s_mul_i32", S(34), S(14), O_BRANCH); p("s_add_u32", S(33), S(33), S(34))
        p("v_add_u32", vO[u], S(33), vL16)
    ring = D*3072
    p("s_mul_i32", S(35), S(3), ring)
    p("v_lshrrev_b32", V(12), 2, V(0))
    p("v_mul_u32_u24", V(12), 96, V(12))
    p("v_and_b32", V(13), 3, V(0)); p("v_lshlrev_b32", V(13), 3, V(13))
    p("v_add_u32", vA, V(12), V(13)); p("v_add_u32", vA, S(35), vA)
    p("s_mul_i32", S(36), S(3), 32*5120)
    p("s_mul_i32", S(37), S(3), 32*36864); p("s_mul_i32", S(38), S(18), 96); p("s_add_u32", S(37), S(37), S(38))
    acc = lambda u, nt: V(16 + (u*3+nt)*4, 4)
    Ab = lambda buf, nt: V(64 + buf*12 + nt*4, 4)
    Of = lambda slot, u: V(96 + (slot*4+u)*4, 4)
    assert 96 + 16*D <= 256
    for r in range(48): p("v_mov_b32", V(16+r), 0)
    NK = 32
    def issue(k):
        sl = k % D
        p("s_add_u32", M0, S(35), sl*3072)
        for pp in range(3):
            p("buffer_load_dwordx4", vW[pp], S(20,4), S(37), mods=f"offen offset:{pp*1024} {wpol} lds", tag=f"W{k}")
        for u in range(4):
            p("buffer_load_dwordx4", Of(sl,u), vO[u], S(24,4), S(36), mods=f"offen {opol}")
        p("s_add_u32", S(36), S(36), 5120); p("s_add_u32", S(37), S(37), 36864)
    def reads(k):
        sl = k % D
        for nt in range(3):
            for h in range(2):
                i = p("ds_read_b64_tr_b16", Ab(k%2, nt).sub(2*h, 2), vA, mods=f"offset:{sl*3072 + nt*32 + h*1536}")
                i.ldsuse = {f"W{k}"}
    for k in range(D): issue(k)
    p.wait(vm=7*(D-1)); reads(0)
    for k in range(NK):
        if k+1 < NK:
            outstanding_groups = min(NK-1, k+D-1) - (k+1)
            p.wait(vm=7*outstanding_groups); reads(k+1); p.wait(lgkm=6)
        else:
            p.wait(lgkm=0)
        for u in range(4):
            for nt in range(3):
                p("v_mfma_f32_16x16x32_bf16", acc(u,nt), Ab(k%2,nt), Of(k%D,u), acc(u,nt))
        if k + D < NK: issue(k+D)
    p("s_barrier")
    p("s_lshl_b32", S(39), S(3), 0)
    p("s_mul_i32", S(39), S(3), 12*1024)
    p("v_add_u32", V(12), S(39), vL16)
    for u in range(4):
        for nt in range(3):
            p("ds_write_b128", V(12), acc(u,nt), mods=f"offset:{(u*3+nt)*1024}")
    p.wait(lgkm=0); p("s_barrier")
    p("s_mul_i32", S(39), S(3), 3*1024)
    p("v_add_u32", V(12), S(39), vL16)
    for w in range(4):
        for nt in range(3):
            p("ds_read_b128", V(64 + (w*3+nt)*4, 4), V(12), mods=f"offset:{w*12*1024 + nt*1024}")
    p("s_lshl_b32", S(32), S(17), 2); p("s_add_u32", S(32), S(32), S(3)); p("s_mul_i32", S(32), S(32), 16*2304)
    p("s_mul_i32", S(33), S(14), 1152); p("s_add_u32", S(32), S(32), S(33)); p("s_mul_i32", S(33), S(18), 96); p("s_add_u32", S(32), S(32), S(33))
    p("v_and_b32", V(13), 15, V(0)); p("v_mul_u32_u24", V(13), 2304, V(13))
    p("v_lshrrev_b32", V(14), 4, V(0)); p("v_lshlrev_b32", V(14), 3, V(14)); p("v_add_u32", V(13), V(13), V(14))
    p.wait(lgkm=0)
    for nt in range(3):
        for i in range(4):
            a = lambda w: V(64 + (w*3+nt)*4 + i)
            p("v_add_f32", a(0), a(0), a(1)); p("v_add_f32", a(2), a(2), a(3)); p("v_add_f32", a(0), a(0), a(2))
        b = 64 + nt*4
        p("v_cvt_pk_bf16_f32", V(16+2*nt), V(b), V(b+1)); p("v_cvt_pk_bf16_f32", V(17+2*nt), V(b+2), V(b+3))
        p("buffer_store_dwordx2", V(16+2*nt, 2), V(13), S(28,4), S(32), mods=f"offen offset:{32*nt}")
    p.label(f"{L}_end")
    p("s_endpgm")
    pad_hazards(p)
    n, errs = check_trace(p.items, lambda ins, v: False, name="op")
    for e in errs: print("TRACE:", e)
    lds = max(4*ring, 48*1024)
    return p, lds

if __name__ == "__main__":
    import build
    name = "op_kernel"
    p, lds = gen_op_kernel(name)
    txt = f"; @launch kernel={name} grid=(256,1,1) block=(256,1,1) lds={lds}\n" + '.amdgcn_target "amdgcn-amd-amdhsa--gfx950"\n'
    txt += kernel_text(name, p) + KD.format(name=name, vgpr=256, sgpr=102, acc=256)
    open("op.s", "w").write(txt)
    print(build.build("op.s"), len(txt))
```

```python
import sys, json
from asmlib import *
import gen_att, gen_op, build
HDR = """; concat_heads(GQA block, MHA block): Q projection + flash attention, then output projection.
"""
def compact(txt):
    out = []
    for ln in txt.split("\n"):
        s = ln.strip()
        if ";" in s and not s.startswith(";"): s = s.split(";")[0].rstrip()
        s = s.replace(" offset:0 ", " ").replace("  ", " ")
        if s.endswith(" offset:0"): s = s[:-9]
        out.append(s)
    return "\n".join(out)
def gen(opt):
    gen_att.STAMP["on"] = False
    pa, ldsa = gen_att.gen_att_kernel("att_kernel", opt)
    po, ldso = gen_op.gen_op_kernel("op_kernel", opol=opt.get("op_opol", ""), wpol=opt.get("op_wpol", ""))
    txt = HDR + f"; @launch kernel=att_kernel grid=(256,1,1) block=(256,1,1) lds={ldsa}\n"
    txt += f"; @launch kernel=op_kernel grid=(256,1,1) block=(256,1,1) lds={ldso}\n"
    txt += '.amdgcn_target "amdgcn-amd-amdhsa--gfx950"\n'
    body = kernel_text("att_kernel", pa) + kernel_text("op_kernel", po)
    body += KD.format(name="att_kernel", vgpr=512, sgpr=102, acc=256) + KD.format(name="op_kernel", vgpr=256, sgpr=102, acc=256)
    return txt + compact(body)
if __name__ == "__main__":
    out = sys.argv[1]
    opt = json.loads(sys.argv[2]) if len(sys.argv) > 2 else {}
    t = gen(opt)
    open(out, "w").write(t)
    print(build.build(out), len(t))
```

```python
import re


class R:
    __slots__ = ("k", "n", "c")

    def __init__(self, k, n, c=1):
        self.k, self.n, self.c = k, n, c

    def __str__(self):
        if self.k in ("vcc", "exec", "m0", "scc"):
            return self.k
        return f"{self.k}{self.n}" if self.c == 1 else f"{self.k}[{self.n}:{self.n + self.c - 1}]"

    def regs(self):
        if self.k == "vcc":
            return [("vcc", 0)]
        if self.k in ("exec", "m0", "scc"):
            return [(self.k, 0)]
        return [(self.k, self.n + i) for i in range(self.c)]

    def __getitem__(self, i):
        if isinstance(i, slice):
            a = i.start or 0
            b = self.c if i.stop is None else i.stop
            return R(self.k, self.n + a, b - a)
        assert 0 <= i < self.c, (i, self.c)
        return R(self.k, self.n + i, 1)

    def sub(self, off, cnt):
        assert off + cnt <= self.c, (off, cnt, self.c)
        return R(self.k, self.n + off, cnt)


def V(n, c=1):
    assert 0 <= n and n + c <= 256, (n, c)
    return R("v", n, c)


def A(n, c=1):
    assert 0 <= n and n + c <= 256, (n, c)
    return R("a", n, c)


def S(n, c=1):
    assert 0 <= n and n + c <= 102, (n, c)
    return R("s", n, c)


VCC = R("vcc", 0)
EXEC = R("exec", 0)
M0 = R("m0", 0)
SCC = ("scc", 0)


class Neg:
    def __init__(self, r):
        self.r = r

    def __str__(self):
        return "-" + str(self.r)

    def regs(self):
        return self.r.regs()


class Abs:
    def __init__(self, r):
        self.r = r

    def __str__(self):
        return "|" + str(self.r) + "|"

    def regs(self):
        return self.r.regs()


TRANS = ("v_exp_f32", "v_log_f32", "v_rcp_f32", "v_rsq_f32", "v_sqrt_f32", "v_sin_f32", "v_cos_f32")


def _regs(x):
    return x.regs() if isinstance(x, (R, Neg, Abs)) else []


class Ins:
    __slots__ = ("op", "ops", "mods", "kind", "defs", "uses", "tag", "srcc", "passes", "ab", "target", "comment", "ldsuse", "tile", "need", "cost")

    def __init__(self, op, ops, mods="", tag=None, comment=None):
        self.op, self.ops, self.mods, self.tag, self.comment = op, list(ops), mods, tag, comment
        self.srcc = []
        self.ab = []
        self.passes = 0
        self.target = None
        self.ldsuse = None
        self.tile = None
        self.need = None
        self.cost = None
        d, u = [], []
        o = self.ops
        allr = lambda xs: [r for x in xs for r in _regs(x)]
        if op.startswith("v_mfma"):
            self.kind = "mfma"
            d = _regs(o[0]); self.ab = allr(o[1:3]); self.srcc = _regs(o[3]); u = self.ab + self.srcc
            self.passes = 8 if "32x32" in op else 4
        elif op.startswith("v_"):
            self.kind = "trans" if op.replace("_e32", "").replace("_e64", "") in TRANS else "valu"
            if op.startswith("v_cmp"):
                d = _regs(o[0]); u = allr(o[1:])
            elif "permlane" in op and "swap" in op:
                d = allr(o[:2]); u = allr(o[:2])
            elif op.startswith(("v_fmac", "v_pk_fmac", "v_dot2c")):
                d = _regs(o[0]); u = allr(o)
            elif op.startswith("v_writelane"):
                d = _regs(o[0]); u = allr(o)
            elif op.startswith(("v_add_co", "v_sub_co", "v_addc_co", "v_subb_co")):
                d = allr(o[:2]); u = allr(o[2:])
            else:
                d = _regs(o[0]); u = allr(o[1:])
                if op.startswith("v_cndmask") and len(o) == 3:
                    u += [("vcc", 0)]
        elif op.startswith("ds_"):
            self.kind = "ds"
            if op.startswith(("ds_read", "ds_bpermute", "ds_permute", "ds_swizzle")):
                d = _regs(o[0]); u = allr(o[1:])
            else:
                u = allr(o)
        elif op.startswith(("buffer_", "global_")):
            self.kind = "vmem"
            if op in ("buffer_wbl2", "buffer_inv"):
                pass
            elif " lds" in " " + mods or "load_lds" in op:
                u = allr(o) + [("m0", 0)]
            elif "_load" in op:
                d = _regs(o[0]); u = allr(o[1:])
            elif "atomic" in op and "sc0" in mods:
                d = _regs(o[0]); u = allr(o[1:])
            else:
                u = allr(o)
        elif op.startswith(("s_load", "s_memrealtime", "s_memtime")):
            self.kind = "smem"
            d = _regs(o[0]); u = allr(o[1:])
        elif op == "s_waitcnt":
            self.kind = "wait"
        elif op == "s_nop":
            self.kind = "nop"
        elif op == "s_barrier":
            self.kind = "barrier"
        elif op in ("s_endpgm",):
            self.kind = "end"
        elif op == "s_call_b64":
            self.kind = "call"; self.target = o[1]; d = _regs(o[0])
        elif op == "s_setpc_b64":
            self.kind = "ret"; u = _regs(o[0])
        elif op.startswith(("s_branch", "s_cbranch")):
            self.kind = "branch"
            self.target = o[0]
            if "scc" in op: u = [SCC]
            if "vcc" in op: u = [("vcc", 0)]
            if "exec" in op: u = [("exec", 0)]
        elif op.startswith("s_"):
            self.kind = "salu"
            if op.startswith(("s_cmp", "s_bitcmp")):
                d = [SCC]; u = allr(o)
            elif op in ("s_setprio", "s_sleep", "s_sethalt"):
                pass
            elif op.startswith("s_getreg"):
                d = _regs(o[0])
            else:
                d = _regs(o[0]); u = allr(o[1:])
                if op.startswith(("s_add", "s_sub", "s_and", "s_or", "s_xor", "s_lshl", "s_lshr", "s_ashr", "s_min", "s_max", "s_andn2", "s_orn2", "s_not", "s_bfe")):
                    d = d + [SCC]
                if op.startswith(("s_addc", "s_subb", "s_cselect")):
                    u = u + [SCC]
                if "saveexec" in op:
                    d = d + [("exec", 0)]; u = u + [("exec", 0)]
                if op.startswith(("s_addk", "s_mulk")):
                    u = u + _regs(o[0])
        else:
            raise ValueError("unknown op " + op)
        self.defs, self.uses = d, u

    def text(self):
        if self.op == "s_waitcnt":
            s = "s_waitcnt " + self.mods
        else:
            s = self.op
            if self.ops:
                s += " " + ", ".join(str(x) for x in self.ops)
            if self.mods:
                s += " " + self.mods
        if self.comment:
            s += "   ; " + self.comment
        return s


class Label:
    def __init__(self, name):
        self.name = name


class Prog:
    def __init__(self):
        self.items = []
        self._uid = 0

    def __call__(self, op, *ops, mods="", tag=None, comment=None, vop3=False):
        if vop3: op = op + "_e64"
        i = Ins(op, ops, mods, tag, comment)
        self.items.append(i)
        return i

    def add(self, ins):
        if isinstance(ins, (list, tuple)):
            for x in ins: self.add(x)
        else:
            self.items.append(ins)

    def label(self, name):
        self.items.append(Label(name))

    def uid(self, base):
        self._uid += 1
        return f"{base}_{self._uid}"

    def wait(self, vm=None, lgkm=None):
        m = []
        if vm is not None:
            assert 0 <= vm <= 63, vm
            m.append(f"vmcnt({vm})")
        if lgkm is not None:
            assert 0 <= lgkm <= 15, lgkm
            m.append(f"lgkmcnt({lgkm})")
        return self("s_waitcnt", mods=" ".join(m))

    def nop(self, n):
        while n > 0:
            k = min(n, 16)
            self("s_nop", k - 1)
            n -= k

    def text(self):
        out = []
        for it in self.items:
            if isinstance(it, Label):
                out.append(it.name + ":")
            elif isinstance(it, str):
                out.append(it)
            else:
                out.append("    " + it.text())
        return "\n".join(out) + "\n"


def mk(op, *ops, mods="", tag=None, comment=None):
    return Ins(op, ops, mods, tag, comment)


def mkwait(vm=None, lgkm=None):
    m = []
    if vm is not None:
        assert 0 <= vm <= 63, vm
        m.append(f"vmcnt({vm})")
    if lgkm is not None:
        assert 0 <= lgkm <= 15, lgkm
        m.append(f"lgkmcnt({lgkm})")
    return Ins("s_waitcnt", (), " ".join(m))


CAP = 24


def _states(ins):
    if ins.kind == "nop":
        return int(ins.ops[0]) + 1
    return 1


class HState:
    def __init__(self):
        self.m = {}

    def copy(self):
        h = HState(); h.m = dict(self.m); return h

    def merge(self, o):
        ch = False
        for k, v in o.m.items():
            if k not in self.m or v < self.m[k]:
                self.m[k] = v; ch = True
        return ch

    def age(self, ev, reg):
        return self.m.get((ev, reg), 1000)

    def step(self, n):
        dead = []
        for k in self.m:
            self.m[k] += n
            if self.m[k] > CAP: dead.append(k)
        for k in dead: del self.m[k]


def need(ins, st):
    req = 0

    def chk(ev, regs, n):
        nonlocal req
        for r in regs:
            a = st.age(ev, r)
            if a < n and n - a > req:
                req = n - a

    k = ins.kind
    vec = lambda rs: [r for r in rs if r[0] in ("v", "a")]
    sg = lambda rs: [r for r in rs if r[0] in ("s", "vcc")]
    if k == "mfma":
        chk("valu_w", vec(ins.uses), 2)
        chk("mfma_w4", ins.ab, 8); chk("mfma_w8", ins.ab, 12)
        key = ("mfma_exact", (ins.op, tuple(ins.srcc)))
        for r in ins.srcc:
            for ev, n in (("mfma_w4", 6), ("mfma_w8", 10)):
                a = st.age(ev, r)
                if a < n:
                    prod = st.m.get(("mfma_sig", r))
                    sig = st.__dict__.get("sig", {}).get(r)
                    if sig != (ins.op, tuple(ins.srcc)):
                        req = max(req, n - a)
        for r in ins.defs:
            if r not in ins.srcc:
                chk("mfma_w4", [r], 6); chk("mfma_w8", [r], 10)
    if k in ("valu", "trans"):
        chk("mfma_w4", vec(ins.uses) + vec(ins.defs), 8)
        chk("mfma_w8", vec(ins.uses) + vec(ins.defs), 12)
        chk("mfma_c4", vec(ins.defs), 3); chk("mfma_c8", vec(ins.defs), 7)
        if k == "valu":
            chk("trans_w", vec(ins.uses), 1)
        chk("valu_sw", sg(ins.uses), 2)
        chk("st_data", vec(ins.defs), 2)
        if ins.op.startswith(("v_readlane", "v_readfirstlane")):
            chk("valu_w", vec(ins.uses), 1)
        if ins.op.startswith(("v_readlane", "v_writelane")):
            chk("valu_sw", sg(ins.uses), 4)
        if "permlane" in ins.op:
            chk("valu_w", vec(ins.uses), 2)
        if ins.op.startswith("v_dot"):
            chk("dot_w", vec([r for x in ins.ops[1:] for r in _regs(x)]), 3)
        else:
            chk("dot_w", vec(ins.uses) + vec(ins.defs), 3)
        if "dpp" in ins.op or "row_" in ins.mods or "quad_perm" in ins.mods:
            chk("valu_w", vec(ins.uses), 2)
    if k == "mfma":
        chk("dot_w", vec(ins.uses), 3)
    if k in ("vmem", "ds"):
        chk("dot_w", vec(ins.uses), 3)
        chk("mfma_w4", vec(ins.uses) + vec(ins.defs), 8)
        chk("mfma_w8", vec(ins.uses) + vec(ins.defs), 12)
        chk("st_data", vec(ins.defs), 1)
        if k == "vmem":
            chk("valu_sw", sg(ins.uses), 5)
            if ("m0", 0) in ins.uses:
                chk("m0w", [("m0", 0)], 1)
    return req


def update(ins, st):
    n = _states(ins)
    st.step(n)
    k = ins.kind
    if not hasattr(st, "sig"): st.sig = {}
    if k in ("valu", "trans"):
        for r in ins.defs:
            if r[0] in ("v", "a"):
                st.m[("valu_w", r)] = 0
                if k == "trans": st.m[("trans_w", r)] = 0
                else: st.m.pop(("trans_w", r), None)
                st.m.pop(("mfma_w4", r), None); st.m.pop(("mfma_w8", r), None)
                if ins.op.startswith("v_dot"): st.m[("dot_w", r)] = 0
                else: st.m.pop(("dot_w", r), None)
            elif r[0] in ("s", "vcc"):
                st.m[("valu_sw", r)] = 0
    elif k == "mfma":
        ev = "mfma_w4" if ins.passes == 4 else "mfma_w8"
        for r in ins.defs:
            st.m[(ev, r)] = 0
            st.sig[r] = (ins.op, tuple(ins.defs))
        evc = "mfma_c4" if ins.passes == 4 else "mfma_c8"
        for r in ins.srcc:
            st.m[(evc, r)] = 0
    elif k == "salu":
        if ("m0", 0) in ins.defs: st.m[("m0w", ("m0", 0))] = 0
        for r in ins.defs:
            st.m.pop(("valu_sw", r), None)
    elif k == "vmem" and "_store" in ins.op and ("x3" in ins.op or "x4" in ins.op):
        for r in ins.uses:
            if r[0] in ("v", "a"): st.m[("st_data", r)] = 0


def pad_hazards(prog, verbose=False):
    items = prog.items
    inserted = 0
    for _ in range(8):
        at_label = getattr(prog, "_lab", {})
        new_at_label = {}
        out = []
        st = HState(); st.sig = {}
        alive = True
        ins_cnt = 0
        for it in items:
            if isinstance(it, str):
                out.append(it); continue
            if isinstance(it, Label):
                src = [x for x in (at_label.get(it.name), new_at_label.get(it.name)) if x is not None]
                if not alive:
                    st = HState(); st.sig = {}
                    first = True
                for x in src:
                    st.merge(x)
                st.sig = {}
                alive = True
                out.append(it); continue
            r = need(it, st)
            if r > 0:
                nop = Ins("s_nop", (r - 1,), comment="hazard pad")
                out.append(nop); update(nop, st); ins_cnt += 1
            out.append(it)
            update(it, st)
            if it.kind == "branch":
                tgt = it.target
                cp = st.copy(); cp.sig = {}
                if tgt in new_at_label: new_at_label[tgt].merge(cp)
                else: new_at_label[tgt] = cp
                if it.op == "s_branch": alive = False
            if it.kind in ("end", "ret"): alive = False
        items = out
        inserted += ins_cnt
        same = True
        for k, v in new_at_label.items():
            old = at_label.get(k)
            if old is None or old.m != v.m: same = False
        prog._lab = new_at_label
        if ins_cnt == 0 and same:
            break
    prog.items = items
    if verbose: print("hazard nops inserted:", inserted)
    return inserted


def parse_wait(ins):
    vm = re.search(r"vmcnt\((\d+)\)", ins.mods); lg = re.search(r"lgkmcnt\((\d+)\)", ins.mods)
    return (int(vm.group(1)) if vm else None, int(lg.group(1)) if lg else None)


def check_trace(items, decide, max_steps=2000000, name=""):
    labels = {it.name: i for i, it in enumerate(items) if isinstance(it, Label)}
    pc = 0
    vmq, lgq = [], []
    visits = {}
    errs = []
    n = 0
    while pc < len(items):
        it = items[pc]; pc += 1
        if not isinstance(it, Ins): continue
        n += 1
        if n > max_steps: errs.append("trace too long"); break
        if it.kind == "wait":
            vm, lg = parse_wait(it)
            if vm is not None:
                while len(vmq) > vm: vmq.pop(0)
            if lg is not None:
                if any(e[2] == "smem" for e in lgq) and lg != 0:
                    errs.append(f"{name}: counted lgkmcnt with smem outstanding: {it.text()}")
                while len(lgq) > lg: lgq.pop(0)
            continue
        touched = set(it.uses) | set(it.defs)
        for q, qn in ((vmq, "vm"), (lgq, "lgkm")):
            for e in q:
                hit = touched & e[0]
                if hit and not (it.kind in ("ds", "vmem", "smem") and not (set(it.uses) & e[0]) and False):
                    errs.append(f"{name}: {it.text()} touches {sorted(hit)[:4]} with {qn} load in flight ({e[3]})")
        if it.ldsuse is not None:
            for e in vmq:
                if e[1] is not None and e[1] in it.ldsuse:
                    errs.append(f"{name}: {it.text()} reads LDS tag {e[1]} while DMA in flight")
        if it.kind == "vmem" and it.op not in ("buffer_wbl2", "buffer_inv"):
            vmq.append((set(it.defs), it.tag, "vmem", it.text()))
            if len(vmq) > 63: errs.append(f"{name}: more than 63 vm ops outstanding at {it.text()}")
        elif it.kind == "ds":
            lgq.append((set(it.defs), it.tag, "ds", it.text()))
        elif it.kind == "smem":
            lgq.append((set(it.defs), it.tag, "smem", it.text()))
        elif it.kind == "branch":
            key = id(it)
            visits[key] = visits.get(key, 0) + 1
            taken = True if it.op == "s_branch" else decide(it, visits[key])
            if taken: pc = labels[it.target]
        elif it.kind == "call":
            errs.append("call executed in trace")
        elif it.kind == "end":
            break
        if len(errs) > 20: break
    return n, errs


def interleave(primary, fill, ratio=None, lead=0):
    out = []
    np_, nf = len(primary), len(fill)
    if np_ == 0: return list(fill)
    fi = 0
    for i, p in enumerate(primary):
        out.append(p)
        want = ((i + 1) * nf) // np_
        while fi < want:
            out.append(fill[fi]); fi += 1
    out.extend(fill[fi:])
    return out


KD = """.section .rodata,"a"
.p2align 6
.amdhsa_kernel {name}
  .amdhsa_next_free_vgpr {vgpr}
  .amdhsa_next_free_sgpr {sgpr}
  .amdhsa_accum_offset {acc}
  .amdhsa_group_segment_fixed_size 0
  .amdhsa_kernarg_size 104
  .amdhsa_user_sgpr_count 2
  .amdhsa_user_sgpr_kernarg_segment_ptr 1
  .amdhsa_system_sgpr_workgroup_id_x 1
  .amdhsa_float_denorm_mode_32 3
.end_amdhsa_kernel
"""


def kernel_text(name, prog):
    return f".text\n.globl {name}\n.p2align 8\n.type {name},@function\n{name}:\n" + prog.text()


def mkneed(kind):
    i = Ins("s_waitcnt", (), "vmcnt(63)")
    i.need = kind
    return i


def resolve_needs(items, deciders, ipt_of):
    labels = {it.name: i for i, it in enumerate(items) if isinstance(it, Label)}
    best = {}
    for di, decide in enumerate(deciders):
        ipt = ipt_of(di)
        pc = 0; issued = []; cnt = {}; consumed = {}; visits = {}; n = 0
        while pc < len(items):
            it = items[pc]; pc += 1
            if not isinstance(it, Ins): continue
            n += 1
            assert n < 3000000
            if it.kind == "vmem" and it.op not in ("buffer_wbl2", "buffer_inv"):
                if it.tile is not None:
                    c = cnt.get(it.tile, 0); cnt[it.tile] = c + 1
                    issued.append((it.tile, c // ipt))
                else:
                    issued.append(None)
            elif it.kind == "wait" and it.need is not None:
                k = it.need; sq = consumed.get(k, 0); consumed[k] = sq + 1
                assert cnt.get(k, 0) >= (sq + 1) * ipt, f"tile {k}{sq} not fully issued before its wait"
                idx = max(i for i, e in enumerate(issued) if e == (k, sq))
                N = min(63, len(issued) - 1 - idx)
                best[id(it)] = min(best.get(id(it), 63), N)
            elif it.kind == "branch":
                key = id(it); visits[key] = visits.get(key, 0) + 1
                taken = True if it.op == "s_branch" else decide(it, visits[key])
                if taken: pc = labels[it.target]
            elif it.kind == "end":
                break
    for it in items:
        if isinstance(it, Ins) and it.need is not None:
            assert id(it) in best, "wait never reached"
            it.mods = f"vmcnt({best[id(it)]})"
```

```python
import math
from asmlib import *

O_BRANCH = 8 * 32 * 20 * 1024
LDS_TOTAL = 163840
SCR = 131072
CSCALE = math.log2(math.e) / math.sqrt(128.0)


def f2u(x):
    import struct
    return struct.unpack("<I", struct.pack("<f", x))[0]


sWG, sW = S(2), S(3)
sX, sWQ, sK, sVv, sO = S(8, 4), S(12, 4), S(16, 4), S(20, 4), S(24, 4)
sC = S(28)
s24 = S(29)
sRET = S(30, 2)
sROT, sBASE, sN, sOFF, sRING, sLOOP, sHEAD = S(32), S(33), S(34), S(35), S(37), S(38), S(39)
sT0, sT1, sT2, sT3 = S(40), S(41), S(42), S(43)
sK64, sKW = S(44), S(45)
sJ, sS, sB, sH0 = S(46), S(47), S(48), S(49)
sWS = S(50, 2)
sHD, sKG = S(52), S(53)
sTIME = S(54, 2)
sDBG = S(56, 2)


def O(t, dt): return V((t * 8 + dt) * 4, 4)
def Sb(par): return V(160 + 8 * par, 8)
def Pb(par): return V(176 + 4 * par, 4)
def MC(t): return V(184 + t)
vM1, vM2 = V(189), V(190)
def aK(s): return V(191 + s)
def aV(dt): return V(195 + dt)
def vKd(i): return V(203 + i)
def vVd(i): return V(207 + i)
vL16 = V(209)
vLane = V(210)
vT = V(211)
FREE = 212


def Q(s, t): return A((s * 5 + t) * 4, 4)
def Q2(s, t): return A(80 + (s * 5 + t) * 4, 4)
def KF(kt, s): return A(160 + (kt * 4 + s) * 4, 4)
def VF(dt): return A(192 + dt * 4, 4)
def LA(t): return A(224 + t * 4, 4)
ONES = A(244, 4)
SEL1 = A(248, 4)
SEL2 = A(252, 4)


class Cfg:
    def __init__(self, kind):
        self.kind = kind
        self.B = kind == "B"
        self.nslots = 4 if self.B else 8
        self.ipt = 8 if self.B else 4
        self.steps = 8 if self.B else 16
        self.W = [16384, 49152, 81920, 114688] if self.B else [32768, 49152, 98304, 114688]
        self.X = [SCR + 5120 * i for i in range(4)]


def srd_from(p, dst, lo, hi, off_s, size):
    if off_s is not None:
        p("s_add_u32", dst[0], lo, off_s); p("s_addc_u32", dst[1], hi, 0)
        p("s_and_b32", dst[1], dst[1], "0xffff")
    else:
        p("s_mov_b32", dst[0], lo); p("s_and_b32", dst[1], hi, "0xffff")
    p("s_mov_b32", dst[2], size); p("s_mov_b32", dst[3], "0x20000")


STAMP = {"on": False}
def stamp(p, i):
    if STAMP["on"]:
        p("s_memrealtime", S(70 + 2 * i, 2))


def calc_off(p, c):
    if c.B:
        p("s_add_u32", sT0, sN, sROT); p("s_and_b32", sT0, sT0, 7); p("s_lshl_b32", sT0, sT0, 15)
        p("s_lshr_b32", sT1, sN, 3); p("s_lshl_b32", sT1, sT1, 18)
    else:
        p("s_add_u32", sT0, sN, sROT); p("s_and_b32", sT0, sT0, 15); p("s_lshl_b32", sT0, sT0, 14)
        p("s_lshr_b32", sT1, sN, 4); p("s_lshl_b32", sT1, sT1, 18)
    p("s_add_u32", sT0, sT0, sT1); p("s_add_u32", sOFF, sT0, sBASE); p("s_add_u32", sN, sN, 1)


EXP = {}
def dma_tile(c, kind, slot, tag, pol="nt"):
    L = []
    if EXP.get("nodma"): return L
    srd = sK if kind == "K" else sVv
    for half in range(c.ipt // 4):
        L.append(mk("s_add_u32", M0, sRING, slot * 8192 + half * 4096))
        if half:
            L.append(mk("s_add_u32", sT2, sOFF, 4096)); so = sT2
        else:
            L.append(mk("s_nop", 0)); so = sOFF
        for i in range(4):
            vo = vKd(i) if kind == "K" else vVd(i & 1)
            d = mk("buffer_load_dwordx4", vo, srd, so, mods=f"offen offset:{i * 1024} {pol} lds", tag=tag)
            d.tile = kind
            L.append(d)
    return L


def dma_groups(c, kind, slot, tag):
    out, g = [], []
    for x in dma_tile(c, kind, slot, tag):
        g.append(x)
        if x.kind == "vmem": out.append(g); g = []
    return out


def k_reads(slot, tag):
    L = []
    if EXP.get("noreads"): return [mk("s_nop", 0) for _ in range(8)]
    for s in range(4):
        for kt in range(2):
            i = mk("ds_read_b128", KF(kt, s), aK(s), mods=f"offset:{slot * 8192 + kt * 4096}")
            i.ldsuse = {tag}
            L.append(i)
    return L


def v_reads(slot, dt, tag):
    L = []
    if EXP.get("noreads"): return L
    for h in range(2):
        i = mk("ds_read_b64_tr_b16", VF(dt).sub(2 * h, 2), aV(dt), mods=f"offset:{slot * 8192 + h * 4096}")
        i.ldsuse = {tag}
        L.append(i)
    return L


MF = "v_mfma_f32_16x16x32_bf16"


def qk_mfmas(t, par):
    L = []
    for s in range(4):
        for kt in range(2):
            d = Sb(par).sub(4 * kt, 4)
            L.append(mk(MF, d, KF(kt, s), Q(s, t), 0 if s == 0 else d))
    return L


def pv_mfmas(t, par, first=False):
    L = []
    for dt in range(8):
        L.append(mk(MF, O(t, dt), VF(dt), Pb(par), 0 if first else O(t, dt)))
    L.append(mk(MF, LA(t), ONES, Pb(par), 0 if first else LA(t)))
    return L


def sm_valu(p, t, par, first, slow_sites):
    x = Sb(par)
    L = []
    if first:
        L.append(mk("v_max3_f32", vM1, x[0], x[1], x[2])); L.append(mk("v_max3_f32", vM2, x[3], x[4], x[5]))
        L.append(mk("v_max3_f32", vM1, vM1, x[6], x[7])); L.append(mk("v_max_f32", vM1, vM1, vM2))
        L.append(mk("v_mov_b32", vM2, vM1)); L.append(mk("v_permlane32_swap_b32", vM1, vM2)); L.append(mk("v_max_f32", vM1, vM1, vM2))
        L.append(mk("v_mov_b32", vM2, vM1)); L.append(mk("v_permlane16_swap_b32", vM1, vM2)); L.append(mk("v_max_f32", vM1, vM1, vM2))
        L.append(mk("v_mul_f32", vM1, sC, vM1))
        L.append(mk("v_add_f32", vM2, "0x41800000", vM1))
        L.append(mk("v_cmp_gt_f32", VCC, Abs(vM2), s24))
        L.append(mk("v_cndmask_b32", MC(t), 0, vM1))
        for i in range(8): L.append(mk("v_fma_f32", x[i], x[i], sC, Neg(MC(t))))
    else:
        for i in range(8): L.append(mk("v_fma_f32", x[i], x[i], sC, Neg(MC(t))))
        L.append(mk("v_max3_f32", vM1, x[0], x[1], x[2])); L.append(mk("v_max3_f32", vM2, x[3], x[4], x[5]))
        L.append(mk("v_max3_f32", vM1, vM1, x[6], x[7])); L.append(mk("v_max_f32", vM1, vM1, vM2))
        L.append(mk("v_cmp_lt_f32", VCC, "0x41000000", vM1))
        stub = p.uid("stub"); back = p.uid("back")
        br = mk("s_cbranch_vccnz", stub)
        L.append(br); L.append(Label(back))
        slow_sites.append((stub, back, t, par))
    if not EXP.get("noexp"):
        for i in range(8): L.append(mk("v_exp_f32", x[i], x[i]))
    for i in range(4): L.append(mk("v_cvt_pk_bf16_f32", Pb(par)[i], x[2 * i], x[2 * i + 1]))
    return L


def icost(x):
    if isinstance(x, Label): return 0
    if x.kind == "trans": return 8
    if x.kind == "mfma": return 8
    return 4


def merge(mf, va, dm=()):
    n = len(mf)
    place = {}
    for lo, hi, g in dm:
        place.setdefault((lo, hi), []).append(g)
    at = [[] for _ in range(n)]
    for (lo, hi), gs in place.items():
        for k, g in enumerate(gs):
            at[min(n - 1, lo + ((2 * k + 1) * (hi - lo + 1)) // (2 * len(gs)))].append(g)
    side = [sum(icost(x) for x in mf[i] if x.kind != "mfma") + sum(icost(x) for g in at[i] for x in g) for i in range(n)]
    total = sum(side) + sum(icost(x) for x in va)
    out, vi, acc = [], 0, 0
    for i in range(n):
        out.extend(mf[i])
        for g in at[i]: out.extend(g)
        acc += side[i]
        target = total * (i + 1) / n
        while vi < len(va) and (acc + icost(va[vi]) / 2 <= target or isinstance(va[vi], Label)):
            out.append(va[vi]); acc += icost(va[vi]); vi += 1
    out.extend(va[vi:])
    return out


def emit_step(p, c, n_par, slotK_next, slotV, dmaV_slot, dmaK_slot, first, last, slow_sites, tagn, carry):
    left = []
    if c.B:
        vg = dma_groups(c, "V", dmaV_slot, f"V{tagn + 2}")
        tmp = Prog(); calc_off(tmp, c)
        kg = dma_groups(c, "K", dmaK_slot, f"K{tagn + 3}")
        if kg: kg[0] = tmp.items + kg[0]
    else:
        tmp = Prog(); calc_off(tmp, c)
        kg = dma_groups(c, "K", dmaK_slot, f"K{tagn + 4}")
        if kg: kg[0] = tmp.items + kg[0]
        vg = dma_groups(c, "V", dmaV_slot, f"V{tagn + 4}")
    for t in range(5):
        par = (n_par + t) & 1
        mf, dm = [], []
        va = sm_valu(p, t, par, first, slow_sites)
        if t < 4:
            qk = qk_mfmas(t + 1, par ^ 1)
            if t == 3:
                pre = [mkneed("K")]
                if not c.B: pre.append(mk("s_barrier"))
                kr = k_reads(slotK_next, f"K{tagn + 1}")
                mf.append(pre + [qk[0], kr[0]])
                for i in range(1, 8): mf.append([qk[i], kr[i]])
            else:
                for m in qk: mf.append([m])
        elif not last:
            qk = qk_mfmas(0, par ^ 1)
            mf.append([mkwait(lgkm=0), qk[0]])
            for m in qk[1:]: mf.append([m])
        else:
            mf.append([mkwait(lgkm=0)])
        nq = len(mf)
        if t == 0:
            pre = [mkneed("V")]
            if not c.B: pre.append(mk("s_barrier"))
            if first:
                mf.append(pre)
                for dt in range(8): mf.append(v_reads(slotV, dt, f"V{tagn}") or [mk("s_nop", 0)])
            else:
                pv = pv_mfmas(4, par ^ 1)
                mf.append(pre + [pv[0]] + v_reads(slotV, 0, f"V{tagn}"))
                for dt in range(1, 8): mf.append([pv[dt]] + v_reads(slotV, dt, f"V{tagn}"))
                mf.append([pv[8]])
        else:
            pv = pv_mfmas(t - 1, par ^ 1, first=first)
            if t == 1:
                mf.append([mkwait(lgkm=0), pv[0]])
                for m in pv[1:]: mf.append([m])
            else:
                for m in pv: mf.append([m])
        n = len(mf)
        if c.B:
            mode = EXP.get("dmode", 1)
            if mode == 0:
                if t == 0: dm = [(0, nq - 1, g) for g in carry]
                elif t == 1: dm = [(nq, n - 1, g) for g in vg[0:2]]
                elif t == 2: dm = [(0, n - 1, g) for g in vg[2:6]]
                elif t == 3: dm = [(nq, n - 1, g) for g in vg[6:8]]
                else:
                    if last: dm = [(0, n - 1, g) for g in kg]
                    else: dm = [(0, n - 1, g) for g in kg[0:4]]; left = kg[4:8]
            elif mode == 1:
                if t == 1: dm = [(nq, n - 1, g) for g in vg[0:4]]
                elif t == 2: dm = [(0, nq - 1, g) for g in vg[4:8]]
                elif t == 4: dm = [(0, n - 1, g) for g in kg]
            else:
                if t == 1: dm = [(nq, n - 1, g) for g in vg]
                elif t == 4: dm = [(0, min(n - 1, 8), g) for g in kg]
        else:
            mode = EXP.get("dmode", 1)
            if mode == 0:
                if t == 0: dm = [(nq, n - 1, g) for g in kg[0:2]]
                elif t == 1: dm = [(0, n - 1, g) for g in kg[2:4]]
                elif t == 3: dm = [(0, n - 1, g) for g in vg[0:2]]
                elif t == 4: dm = [(0, n - 1, g) for g in vg[2:4]]
            else:
                if t == 0: dm = [(nq, n - 1, g) for g in kg]
                elif t == 3: dm = [(0, nq - 1, g) for g in vg]
        p.add(merge(mf, va, dm))
    return left


def emit_drain(p, c, n_par, first_is_only=False):
    par = (n_par + 4) & 1
    p.add(pv_mfmas(4, par))


def emit_slow(p, slow_sites):
    need = set()
    for stub, back, t, par in slow_sites:
        p.label(stub)
        p("s_call_b64", sRET, f"slow_{t}_{par}")
        p("s_branch", back)
        need.add((t, par))
    for t, par in sorted(need):
        x = Sb(par)
        p.label(f"slow_{t}_{par}")
        p.nop(16)
        p("v_mov_b32", vM2, vM1); p.nop(2); p("v_permlane32_swap_b32", vM1, vM2); p.nop(2); p("v_max_f32", vM1, vM1, vM2)
        p("v_mov_b32", vM2, vM1); p.nop(2); p("v_permlane16_swap_b32", vM1, vM2); p.nop(2); p("v_max_f32", vM1, vM1, vM2)
        p("v_max_f32", vM1, 0, vM1)
        p("v_add_f32", MC(t), MC(t), vM1)
        for i in range(8): p("v_sub_f32", x[i], x[i], vM1)
        p("v_sub_f32", vM2, 0, vM1); p("v_exp_f32", vM2, vM2); p.nop(2)
        for dt in range(8):
            for i in range(4): p("v_mul_f32", O(t, dt)[i], O(t, dt)[i], vM2)
        for i in range(4):
            p("v_accvgpr_read_b32", vM1, LA(t)[i]); p.nop(1); p("v_mul_f32", vM1, vM1, vM2); p.nop(1)
            p("v_accvgpr_write_b32", LA(t)[i], vM1)
        p.nop(8)
        p("s_setpc_b64", sRET)


def accQ(sl, half, t): return V(((sl * 2 + half) * 5 + t) * 4, 4)
def AF(buf, sl, half): return V(80 + buf * 16 + (sl * 2 + half) * 4, 4)
def BF(buf, t): return V(112 + buf * 20 + t * 4, 4)
def vWq(i): return V(152 + i)
vXd = V(156)
def aW(hi, sl): return V(157 + hi * 2 + sl)
vXr = V(163)
vQa, vQb, vQc = V(164), V(165), V(166)


def q_setup(p, c):
    l = vLane
    p("v_lshrrev_b32", V(170), 5, l); p("v_and_b32", V(171), 31, l)
    for i in range(4):
        p("v_lshlrev_b32", V(172), 2, V(170))
        if i & 1: p("v_add_u32", V(172), 8, V(172))
        p("v_xor_b32", V(172), V(172), V(171)); p("v_lshlrev_b32", V(172), 4, V(172))
        p("v_lshlrev_b32", V(173), 13, V(170)); p("v_add_u32", V(172), V(172), V(173))
        p("v_add_u32", vWq(i), i * 15360, V(172))
    p("v_lshrrev_b32", V(170), 2, l); p("v_lshrrev_b32", V(171), 4, l); p("v_sub_u32", V(171), 0, V(171))
    p("v_xor_b32", V(171), V(171), l); p("v_and_b32", V(171), 3, V(171)); p("v_lshlrev_b32", V(171), 4, V(171))
    p("v_mul_u32_u24", V(170), 1152, V(170)); p("v_add_u32", vXd, V(170), V(171))


def q_setup2(p, c):
    X = c.X
    l = vLane
    p("v_lshrrev_b32", V(170), 4, l)
    p("v_bfe_u32", V(171), l, 2, 2)
    p("v_and_b32", V(172), 3, l)
    p("v_lshlrev_b32", V(173), 3, V(170)); p("v_add_u32", V(173), V(173), V(171))
    p("v_lshlrev_b32", V(173), 9, V(173))
    for sl in range(2):
        p("s_lshl_b32", sT0, sW, 3); p("s_add_u32", sT0, sT0, 4 * sl)
        p("v_add_u32", V(175), sT0, V(172))
        p("v_lshlrev_b32", V(176), 2, V(171)); p("v_xor_b32", V(175), V(175), V(176))
        p("v_lshlrev_b32", V(175), 4, V(175)); p("v_add_u32", aW(0, sl), V(175), V(173))
        p("v_add_u32", aW(1, sl), 65536, aW(0, sl))
    p("v_and_b32", V(171), 15, l); p("v_lshrrev_b32", V(172), 2, V(171)); p("v_sub_u32", V(172), 0, V(172))
    p("v_xor_b32", V(172), V(172), V(170)); p("v_and_b32", V(172), 3, V(172)); p("v_lshlrev_b32", V(172), 4, V(172))
    p("v_lshlrev_b32", V(171), 6, V(171)); p("v_add_u32", V(171), V(171), V(172)); p("v_add_u32", vXr, X[0], V(171))
    for r in range(80): p("v_mov_b32", V(r), 0)


def own_prefetch(p, c, tiles):
    p("s_mov_b32", sN, 0)
    for kind, n in tiles:
        if kind == "K": calc_off(p, c)
        p.add(dma_tile(c, kind, (2 * n + (kind == "V")) % c.nslots, f"{kind}{n}"))


def l2_prefetch(p, c, qpol):
    l = vLane
    sP, sQ = S(92, 4), S(96, 4)
    p("v_lshlrev_b32", V(169), 7, l)

    def part(xoff, woff, share, nshare):
        p("s_load_dwordx2", S(60, 2), S(0, 2), xoff); p("s_load_dwordx2", S(62, 2), S(0, 2), woff)
        p.wait(lgkm=0)
        srd_from(p, sP, S(60), S(61), None, 737280)
        p("s_lshl_b32", sT0, sJ, 10); srd_from(p, sQ, S(62), S(63), sT0, 0); p("s_sub_u32", sQ[2], 4718592, sT0)
        rows = 32 // nshare
        p("s_mul_i32", sT0, share, rows); p("s_lshl_b32", sT1, sW, 5); p("s_add_u32", sT0, sT0, sT1); p("s_lshl_b32", sT0, sT0, 13)
        for k in range(5):
            for h in range(rows):
                if h: p("s_add_u32", sT1, sT0, h * 8192); so = sT1
                else: so = sT0
                d = p("buffer_load_dwordx4", V(232, 4), vL16, sQ, so, mods=f"offen {qpol}"); d.defs = []
            p("s_add_u32", sT0, sT0, 4 * 262144)
        per = 737280 // (nshare * 4)
        p("s_lshl_b32", sT0, share, 2); p("s_add_u32", sT0, sT0, sW); p("s_mul_i32", sT0, sT0, per)
        for i in range((per + 8191) // 8192):
            d = p("buffer_load_dword", V(229), V(169), sP, sT0, mods=f"offen {qpol}"); d.defs = []
            p("s_add_u32", sT0, sT0, 8192)
    part(40, 64, sS, 32)
    if not c.B:
        p("s_sub_u32", sT3, sS, 16)
        part(0, 24, sT3, 16)


def q_phase(p, c, opt):
    W, X = c.W, c.X
    qpol = opt.get("qpol", "")
    NST = 4
    sGW, sXW, sWL = S(57), S(58), S(59)

    def stage_dma(role, k):
        st, tag = k % NST, f"Q{k}"
        L = []
        g = [mk("s_add_u32", M0, sWL, W[st]), mk("s_add_u32", sT0, sKW, sGW)]
        for i in range(4):
            g.append(mk("buffer_load_dwordx4", vWq(i), sWQ, sT0, mods=f"offen offset:{i * 1024} {qpol} lds", tag=tag))
            L.append(g); g = []
        g = [mk("s_lshr_b32", sT1, sWL, 2), mk("s_add_u32", M0, sT1, X[st]), mk("s_add_u32", sT0, sK64, sXW),
             mk("buffer_load_dwordx4", vXd, sX, sT0, mods=f"offen {qpol} lds", tag=tag)]
        L.append(g)
        if role == 0:
            L.append([mk("s_mov_b32", M0, X[st] + 4096), mk("s_add_u32", sT0, sK64, 4 * 18432),
                      mk("buffer_load_dwordx4", vXd, sX, sT0, mods=f"offen {qpol} lds", tag=tag)])
        L[-1] += [mk("s_add_u32", sK64, sK64, 64), mk("s_add_u32", sKW, sKW, 262144)]
        return L

    def reads(k):
        st, buf = k % NST, k & 1
        hi, lo = W[st] // 65536, W[st] % 65536
        L = []
        for sl in range(2):
            for half in range(2):
                for kk in range(2):
                    i = mk("ds_read_b64_tr_b16", AF(buf, sl, half).sub(2 * kk, 2), aW(hi, sl), mods=f"offset:{lo + kk * 2048 + half * 8}")
                    i.ldsuse = {f"Q{k}"}; L.append([i])
        for t in range(5):
            i = mk("ds_read_b128", BF(buf, t), vXr, mods=f"offset:{st * 5120 + t * 1024}")
            i.ldsuse = {f"Q{k}"}; L.append([i])
        return L

    def mfmas(k):
        buf = k & 1
        return [mk(MF, accQ(sl, half, t), AF(buf, sl, half), BF(buf, t), accQ(sl, half, t))
                for t in range(5) for sl in range(2) for half in range(2)]

    def kstep(role, k, vm, dma, rd=True, mf=True):
        p.wait(vm=vm)
        if STAMP["on"] and STAMP.get("q"):
            p("s_memrealtime", S(90, 2)); p.wait(lgkm=0); p("v_writelane_b32", V(250), S(90), k)
        p("s_barrier")
        fill = dma + (reads(k) if rd else [])
        if mf:
            m = mfmas(k - 1)
            n, nf, fi = opt.get("qspread", 14), len(fill), 0
            for i, x in enumerate(m):
                want = min(nf, ((i + 1) * nf + n - 1) // n)
                while fi < want:
                    p.add(fill[fi]); fi += 1
                p.add(x)
        else:
            for g in fill: p.add(g)
        p.wait(lgkm=0)

    def tile_groups(kind, slot, tag):
        return dma_groups(c, kind, slot, tag)

    done = p.uid("qdone"); r1 = p.uid("qr1")
    q_setup(p, c)
    p("s_mov_b32", sK64, 0); p("s_mov_b32", sKW, 0)
    p("s_lshl_b32", sGW, sW, 16); p("s_mul_i32", sXW, sW, 18432); p("s_lshl_b32", sWL, sW, 12)
    if opt.get("l2pf", True): l2_prefetch(p, c, qpol)
    att_setup(p, c)
    if not c.B: own_prefetch(p, c, [("K", 0), ("V", 0), ("K", 1), ("V", 1)])
    p("s_cmp_eq_u32", sW, 0); p("s_cbranch_scc0", r1).tag = "role0"
    for role in range(2):
        n = 6 if role == 0 else 5
        if role == 1: p.label(r1)
        for k in range(3):
            for g in stage_dma(role, k): p.add(g)
        q_setup2(p, c)
        kstep(role, 0, 2 * n, stage_dma(role, 3), mf=False)
        if STAMP["on"] and STAMP.get("q"):
            for k in range(1, 13): kstep(role, k, 2 * n, stage_dma(role, k + 3))
        else:
            lab = p.uid("qloop")
            p("s_mov_b32", sLOOP, 0)
            p.label(lab)
            for k in range(1, 5): kstep(role, k, 2 * n, stage_dma(role, k + 3))
            p("s_add_u32", sLOOP, sLOOP, 1); p("s_cmp_lt_u32", sLOOP, 3)
            p("s_cbranch_scc1", lab).tag = ("loop", 3)
        kstep(role, 13, 2 * n, stage_dma(role, 16))
        kstep(role, 14, 2 * n, stage_dma(role, 17))
        if c.B:
            p("s_mov_b32", sN, 0); calc_off(p, c)
            kg, vg = tile_groups("K", 0, "K0"), tile_groups("V", 1, "V0")
            kstep(role, 15, 2 * n, kg)
            kstep(role, 16, n + 8, vg)
            kstep(role, 17, 16, [])
        else:
            kstep(role, 15, 2 * n, [])
            kstep(role, 16, n, [])
            kstep(role, 17, 0, [])
        p.add(mfmas(17))
        if role == 0: p("s_branch", done)
    p.label(done)
    p("s_barrier")
    pk = V(80, 40)
    for sl in range(2):
        for t in range(5):
            d = pk.sub((sl * 5 + t) * 4, 4)
            for half in range(2):
                a = accQ(sl, half, t)
                p("v_cvt_pk_bf16_f32", d[2 * half], a[0], a[1]); p("v_cvt_pk_bf16_f32", d[2 * half + 1], a[2], a[3])
    if c.B:
        p("s_mul_i32", sT0, sW, 32768); p("s_add_u32", sT0, sT0, 24576)
    else:
        p("s_lshr_b32", sT0, sW, 1); p("s_lshl_b32", sT0, sT0, 16); p("s_and_b32", sT1, sW, 1); p("s_lshl_b32", sT1, sT1, 13)
        p("s_add_u32", sT0, sT0, sT1); p("s_add_u32", sT0, sT0, 49152)
    p("v_add_u32", vQa, sT0, vL16)
    p("s_lshl_b32", sT1, sW, 11); p("s_add_u32", sT1, sT1, SCR); p("v_add_u32", vQb, sT1, vL16)
    for i in range(10):
        if i < 8: p("ds_write_b128", vQa, pk.sub(4 * i, 4), mods=f"offset:{i * 1024}")
        else: p("ds_write_b128", vQb, pk.sub(4 * i, 4), mods=f"offset:{(i - 8) * 1024}")
    p.wait(lgkm=0); p("s_barrier")

    def rd(dst, wsrc, i, baseZ, offZ, baseY, offY):
        if i < 8: p("ds_read_b128", dst, baseZ, mods=f"offset:{offZ + i * 1024}")
        else: p("ds_read_b128", dst, baseY, mods=f"offset:{offY + (i - 8) * 1024}")
    if c.B:
        p("v_add_u32", vQa, 65536, vL16); p("v_add_u32", vQb, SCR, vL16)
        for wsrc in range(4):
            base = vL16 if wsrc < 2 else vQa
            offZ = (wsrc & 1) * 32768 + 24576
            for i in range(10):
                s, t = 2 * (wsrc & 1) + i // 5, i % 5
                rd(Q(s, t) if wsrc < 2 else Q2(s, t), wsrc, i, base, offZ, vQb, wsrc * 2048)
    else:
        p("s_lshl_b32", sT0, sHD, 16); p("v_add_u32", vQa, sT0, vL16)
        p("s_lshl_b32", sT0, sHD, 12); p("s_add_u32", sT0, sT0, SCR); p("v_add_u32", vQb, sT0, vL16)
        for e in range(2):
            for i in range(10):
                s, t = 2 * e + i // 5, i % 5
                rd(Q(s, t), e, i, vQa, 49152 + e * 8192, vQb, e * 2048)
    p.wait(lgkm=0)
    p("s_barrier")


def att_setup(p, c):
    l = vLane
    F = FREE
    p("v_lshrrev_b32", V(F), 4, l); p("v_and_b32", V(F + 1), 15, l)
    p("v_xor_b32", V(F + 2), V(F), V(F + 1)); p("v_lshlrev_b32", V(F + 3), 8, V(F))
    for i in range(4):
        p("v_xor_b32", V(F + 4), 4 * i, V(F + 2)); p("v_lshlrev_b32", V(F + 4), 4, V(F + 4)); p("v_add_u32", vKd(i), V(F + 3), V(F + 4))
    for i in range(2):
        p("v_lshlrev_b32", V(F + 4), 1, V(F)); p("v_add_u32", V(F + 4), 8 * i, V(F + 4)); p("v_xor_b32", V(F + 4), V(F + 4), V(F + 1))
        p("v_lshlrev_b32", V(F + 4), 4, V(F + 4)); p("v_add_u32", vVd(i), V(F + 3), V(F + 4))


def att_setup2(p, c):
    l = vLane
    F = FREE
    p("v_lshrrev_b32", V(F), 4, l); p("v_and_b32", V(F + 1), 15, l)
    if c.B: p("s_lshl_b32", sT3, sW, 15)
    else: p("s_lshl_b32", sT3, sKG, 16)
    p("v_lshlrev_b32", V(F + 3), 8, V(F + 1)); p("v_add_u32", V(F + 3), sT3, V(F + 3))
    for s in range(4):
        p("v_add_u32", V(F + 4), 4 * s, V(F)); p("v_xor_b32", V(F + 4), V(F + 4), V(F + 1))
        p("v_lshlrev_b32", V(F + 4), 4, V(F + 4)); p("v_add_u32", aK(s), V(F + 3), V(F + 4))
    p("v_lshrrev_b32", V(F + 2), 2, l); p("v_lshlrev_b32", V(F + 3), 8, V(F + 2)); p("v_add_u32", V(F + 3), sT3, V(F + 3))
    p("v_and_b32", V(F + 4), 3, l); p("v_lshlrev_b32", V(F + 4), 3, V(F + 4)); p("v_add_u32", V(F + 3), V(F + 3), V(F + 4))
    p("v_and_b32", V(F + 2), 7, V(F + 2))
    if c.B: p("s_lshl_b32", sT1, sW, 1)
    else: p("s_lshl_b32", sT1, sKG, 2)
    for dt in range(8):
        p("s_add_u32", sT0, sT1, dt); p("s_and_b32", sT0, sT0, 7)
        p("v_xor_b32", V(F + 4), sT0, V(F + 2)); p("v_lshlrev_b32", V(F + 4), 5, V(F + 4)); p("v_add_u32", aV(dt), V(F + 3), V(F + 4))
    p("v_mov_b32", V(F + 4), "0x3f803f80")
    for i in range(4): p("v_accvgpr_write_b32", ONES[i], V(F + 4))
    p("v_lshrrev_b32", V(F + 2), 2, V(F + 1))
    p("v_and_b32", V(F + 3), 3, l)
    p("v_cmp_eq_u32", VCC, V(F + 2), V(F))
    p("v_cndmask_b32", V(F + 5), 7, V(F + 3))
    p("v_mov_b32", V(F + 6), 0); p("v_mov_b32", V(F + 7), 0)
    p("v_mov_b32", V(F + 8), "0x3f80"); p("v_mov_b32", V(F + 9), "0x3f800000")
    p("v_cmp_eq_u32", VCC, 0, V(F + 5)); p("v_cndmask_b32", V(F + 6), V(F + 6), V(F + 8))
    p("v_cmp_eq_u32", VCC, 1, V(F + 5)); p("v_cndmask_b32", V(F + 6), V(F + 6), V(F + 9))
    p("v_cmp_eq_u32", VCC, 2, V(F + 5)); p("v_cndmask_b32", V(F + 7), V(F + 7), V(F + 8))
    p("v_cmp_eq_u32", VCC, 3, V(F + 5)); p("v_cndmask_b32", V(F + 7), V(F + 7), V(F + 9))
    p("v_mov_b32", V(F + 8), 0)
    p("v_accvgpr_write_b32", SEL1[0], V(F + 6)); p("v_accvgpr_write_b32", SEL1[1], V(F + 7))
    p("v_accvgpr_write_b32", SEL1[2], V(F + 8)); p("v_accvgpr_write_b32", SEL1[3], V(F + 8))
    p("v_accvgpr_write_b32", SEL2[0], V(F + 8)); p("v_accvgpr_write_b32", SEL2[1], V(F + 8))
    p("v_accvgpr_write_b32", SEL2[2], V(F + 6)); p("v_accvgpr_write_b32", SEL2[3], V(F + 7))


def epilogue(p, c, sHead, opol=""):
    F = FREE
    B = c.B
    nsrc = 3 if B else 1
    own = [0] if B else [0, 1]
    per_t = 12288 if B else 8192
    rounds = [[0, 1], [2, 3], [4]] if B else [[0, 1, 2], [3, 4]]
    stats = SCR + 24576
    vl = [V(F + t) for t in range(5)]
    vq8 = V(F + 5)
    vWr = [V(F + 6 + d) for d in range(3)]
    vSt, vRd = V(F + 9), V(F + 10)
    vSa = [V(F + 11 + d) for d in range(3)]
    st = lambda d, t: V(F + 14 + (d * 5 + t) * 2, 2)
    p.nop(4)
    for t in range(5): p("v_accvgpr_read_b32", vl[t], LA(t)[0])
    p("v_and_b32", vq8, 15, vLane); p("v_lshlrev_b32", vq8, 3, vq8)
    p("s_mul_i32", sT0, sW, 640); p("s_add_u32", sT0, sT0, stats); p("v_add_u32", vM1, sT0, vq8)
    for t in range(5):
        pr = V(F + 14 + 2 * t, 2)
        p("v_mov_b32", pr[0], MC(t)); p("v_mov_b32", pr[1], vl[t])
        p("ds_write_b64", vM1, pr, mods=f"offset:{t * 128}")
    if B:
        for d in range(1, 4):
            p("s_add_u32", sT0, sW, d); p("s_and_b32", sT0, sT0, 3); p("s_mul_i32", sT0, sT0, 3072)
            p("s_add_u32", sT0, sT0, SCR + (d - 1) * 1024); p("v_add_u32", vWr[d - 1], sT0, vL16)
            p("s_sub_u32", sT0, sW, d); p("s_and_b32", sT0, sT0, 3); p("s_mul_i32", sT0, sT0, 640)
            p("s_add_u32", sT0, sT0, stats); p("v_add_u32", vSa[d - 1], sT0, vq8)
        p("s_mul_i32", sT0, sW, 3072); p("s_add_u32", sT0, sT0, SCR); p("v_add_u32", vRd, sT0, vL16)
        p("s_mul_i32", sT0, sW, 5120); p("s_mul_i32", sT1, sHead, 20480); p("s_add_u32", sT0, sT0, sT1)
    else:
        p("s_xor_b32", sT1, sW, 1)
        p("s_lshl_b32", sT0, sT1, 11); p("s_add_u32", sT0, sT0, SCR); p("v_add_u32", vWr[0], sT0, vL16)
        p("s_mul_i32", sT0, sT1, 640); p("s_add_u32", sT0, sT0, stats); p("v_add_u32", vSa[0], sT0, vq8)
        p("s_lshl_b32", sT0, sW, 11); p("s_add_u32", sT0, sT0, SCR); p("v_add_u32", vRd, sT0, vL16)
        p("s_mul_i32", sT0, sKG, 10240); p("s_mul_i32", sT1, sHD, 20480); p("s_add_u32", sT0, sT0, sT1)
    p("v_add_u32", vSt, sT0, vL16)

    sends = [(d, vWr[d - 1], 0) for d in range(1, 4)] if B else [(2, vWr[0], 0), (3, vWr[0], 1024)]

    def pack(t):
        for f, _, _ in sends:
            a, b = O(t, 2 * f), O(t, 2 * f + 1)
            p("v_cvt_pk_bf16_f32", a[0], a[0], a[1]); p("v_cvt_pk_bf16_f32", a[1], a[2], a[3])
            p("v_cvt_pk_bf16_f32", a[2], b[0], b[1]); p("v_cvt_pk_bf16_f32", a[3], b[2], b[3])

    def write(rts):
        for ti, t in enumerate(rts):
            for f, va, off in sends:
                p("ds_write_b128", va, O(t, 2 * f), mods=f"offset:{ti * per_t + off}")

    for t in rounds[0]: pack(t)
    write(rounds[0])
    for r in rounds[1:]:
        for t in r: pack(t)
    p.wait(lgkm=0); p("s_barrier")
    for d in range(nsrc):
        for t in range(5): p("ds_read_b64", st(d, t), vSa[d], mods=f"offset:{t * 128}")
        if d == 1: p.wait(lgkm=0)
    p.wait(lgkm=0)
    x = Sb(0); y = Sb(1)
    first = True
    for t in range(5):
        for d in range(nsrc):
            p("v_sub_f32", x[d], st(d, t)[0], MC(t))
        if nsrc == 3:
            p("v_max3_f32", x[0], Abs(x[0]), Abs(x[1]), Abs(x[2]))
            if first: p("v_mov_b32", x[4], x[0])
            else: p("v_max_f32", x[4], x[4], x[0])
        else:
            if first: p("v_max_f32", x[4], Abs(x[0]), Abs(x[0]), vop3=True)
            else: p("v_max_f32", x[4], Abs(x[0]), x[4], vop3=True)
        first = False
    gen, join = p.uid("epi_gen"), p.uid("epi_join")
    p("v_cmp_lt_f32", VCC, 0, x[4])
    p("s_cbranch_vccnz", gen).tag = "rare"

    src = lambda k, d: V(F + 14 + (k & 1) * 12 + 4 * d, 4)

    def store(t, f, k):
        a, b = O(t, 2 * f), O(t, 2 * f + 1)
        r = Pb(k & 1)
        p("v_cvt_pk_bf16_f32", r[0], a[0], a[1]); p("v_cvt_pk_bf16_f32", r[1], a[2], a[3])
        p("v_cvt_pk_bf16_f32", r[2], b[0], b[1]); p("v_cvt_pk_bf16_f32", r[3], b[2], b[3])
        off = t * 1024 + f * 5120
        if off > 4095:
            p("s_mov_b32", sT1, off)
            p("buffer_store_dwordx4", r, vSt, sO, sT1, mods=f"offen {opol}")
        else:
            p("buffer_store_dwordx4", r, vSt, sO, 0, mods=f"offen offset:{off} {opol}")

    def process(general):
        z = lambda d, t: V(128 + d * 5 + t) if False else None
        if not general:
            for t in range(5):
                p("v_add_f32", x[t], vl[t], st(0, t)[1])
                for d in range(1, nsrc): p("v_add_f32", x[t], x[t], st(d, t)[1])
            for t in range(5): p("v_rcp_f32", y[t], x[t])
        else:
            for t in range(5):
                p("v_max_f32", x[0], MC(t), st(0, t)[0])
                if nsrc == 3: p("v_max3_f32", x[0], x[0], st(1, t)[0], st(2, t)[0])
                p("v_sub_f32", x[1], MC(t), x[0]); p("v_exp_f32", x[1], x[1])
                for d in range(nsrc):
                    p("v_sub_f32", st(d, t)[0], st(d, t)[0], x[0]); p("v_exp_f32", st(d, t)[0], st(d, t)[0])
                p("v_mul_f32", x[2], x[1], vl[t])
                for d in range(nsrc): p("v_fma_f32", x[2], st(d, t)[0], st(d, t)[1], x[2])
                p("v_rcp_f32", x[2], x[2])
                p("v_mul_f32", y[t], x[1], x[2])
                for d in range(nsrc): p("v_mul_f32", st(d, t)[0], st(d, t)[0], x[2])
            for t in range(5):
                for d in range(nsrc): p("v_accvgpr_write_b32", VF(0)[0].__class__("a", 192 + d * 5 + t), st(d, t)[0])
        k = 0
        for ri, rts in enumerate(rounds):
            if ri:
                p("s_barrier")
                write(rts)
                p.wait(lgkm=0); p("s_barrier")
            jobs = [(ti, t, f) for ti, t in enumerate(rts) for f in own]

            def rd(kk, job):
                ti, t, f = job
                for d in range(nsrc):
                    off = ti * per_t + (d * 1024 if B else f * 1024)
                    p("ds_read_b128", src(kk, d), vRd, mods=f"offset:{off}")
            rd(k, jobs[0])
            for ji, job in enumerate(jobs):
                ti, t, f = job
                if ji + 1 < len(jobs):
                    rd(k + 1, jobs[ji + 1]); p.wait(lgkm=nsrc)
                else:
                    p.wait(lgkm=0)
                a, b = O(t, 2 * f), O(t, 2 * f + 1)
                if not general:
                    for d in range(nsrc):
                        p(MF, a, SEL1, src(k, d), a); p(MF, b, SEL2, src(k, d), b)
                    for r in (a, b):
                        for i in range(4): p("v_mul_f32", r[i], r[i], y[t])
                else:
                    for r in (a, b):
                        for i in range(4): p("v_mul_f32", r[i], r[i], y[t])
                    for d in range(nsrc):
                        D1, D2 = x.sub(0, 4), x.sub(4, 4)
                        p(MF, D1, SEL1, src(k, d), 0); p(MF, D2, SEL2, src(k, d), 0)
                        p("v_accvgpr_read_b32", vM1, A(192 + d * 5 + t))
                        for i in range(4):
                            p("v_fma_f32", a[i], D1[i], vM1, a[i]); p("v_fma_f32", b[i], D2[i], vM1, b[i])
                store(t, f, k)
                k += 1

    process(False)
    p("s_branch", join)
    RARE.append((gen, join, lambda: process(True)))
    p.label(join)


RARE = []


def attention_path(p, c, slow_sites, opt):
    L = c.kind
    l = vLane
    base = 40 if c.B else 0
    p("s_load_dwordx4", S(60, 4), S(0, 2), base)
    p("s_load_dwordx4", S(64, 4), S(0, 2), base + 16)
    p("s_load_dwordx2", sWS, S(0, 2), 96)
    p.wait(lgkm=0)
    p("s_mul_i32", sT0, sB, 92160); srd_from(p, sX, S(60), S(61), sT0, 92160)
    p("s_lshl_b32", sT0, sH0, 8); srd_from(p, sWQ, S(66), S(67), sT0, 0)
    p("s_sub_u32", sWQ[2], 4718592, sT0)
    if c.B:
        p("s_lshl_b32", sT0, sB, 5); p("s_add_u32", sT0, sT0, sH0); p("s_lshl_b32", sT0, sT0, 18); ksz = 524288
    else:
        p("s_lshl_b32", sT0, sB, 4); p("s_lshr_b32", sT1, sH0, 1); p("s_add_u32", sT0, sT0, sT1); p("s_lshl_b32", sT0, sT0, 18); ksz = 262144
    srd_from(p, sK, S(62), S(63), sT0, ksz)
    srd_from(p, sVv, S(64), S(65), sT0, ksz)
    p("s_lshl_b32", sT0, sB, 5); p("s_add_u32", sT0, sT0, sH0); p("s_mul_i32", sT0, sT0, 20480)
    if c.B: p("s_add_u32", sT0, sT0, O_BRANCH)
    srd_from(p, sO, sWS[0], sWS[1], sT0, 40960)
    p("s_lshr_b32", sHD, sW, 1); p("s_and_b32", sKG, sW, 1)
    p("s_mov_b32", sC, hex(f2u(CSCALE))); p("s_mov_b32", s24, "0x41c00000")
    p("s_add_u32", sROT, sS, sJ)
    if c.B:
        p("s_lshl_b32", sBASE, sW, 13); p("s_lshl_b32", sRING, sW, 15)
    else:
        p("s_lshl_b32", sBASE, sKG, 13); p("s_lshl_b32", sT0, sHD, 12); p("s_add_u32", sBASE, sBASE, sT0)
        p("s_lshl_b32", sRING, sKG, 16); p("s_add_u32", sRING, sRING, sT0)
    p("s_mov_b32", sN, 0)

    q_phase(p, c, opt)
    stamp(p, 1)
    opol = opt.get("opol", "")
    if STAMP["on"] and STAMP.get("q"):
        p("s_lshl_b32", sT0, sWG, 2); p("s_add_u32", sT0, sT0, sW); p("s_lshl_b32", sT0, sT0, 8); p("s_add_u32", sT0, sT0, 17 << 20)
        p("v_lshlrev_b32", V(251), 2, vLane); p("v_add_u32", V(251), sT0, V(251))
        p("global_store_dword", V(251), V(250), sWS)
    if c.B:
        calc_off(p, c); p.add(dma_tile(c, "K", 2, "K1")); p.add(dma_tile(c, "V", 3, "V1"))
        att_setup2(p, c)
        p.add(mkneed("K"))
    else:
        calc_off(p, c); p.add(dma_tile(c, "K", 4, "K2")); p.add(dma_tile(c, "V", 5, "V2"))
        calc_off(p, c); p.add(dma_tile(c, "K", 6, "K3")); p.add(dma_tile(c, "V", 7, "V3"))
        att_setup2(p, c)
        p.add(mkneed("K")); p("s_barrier")
    p.add(k_reads(0, "K0"))
    p.wait(lgkm=0)
    if c.B:
        calc_off(p, c); p.add(dma_tile(c, "K", 0, "K2"))

    def args(n):
        ks = (2 * n + 2) % c.nslots; vs = (2 * n + 1) % c.nslots
        if c.B: dv, dk = vs, ks
        else: dv, dk = vs, (2 * n) % c.nslots
        return (n * 5) & 1, ks, vs, dv, dk

    def zero_t4():
        for dt in range(8):
            for i in range(4): p("v_mov_b32", O(4, dt)[i], 0)
        p("v_mov_b32", vM1, 0)
        for i in range(4): p("v_accvgpr_write_b32", LA(4)[i], vM1)

    def copy_groups(gs):
        out = []
        for g in gs:
            ng = []
            for x in g:
                y = mk(x.op, *x.ops, mods=x.mods, tag=x.tag); y.tile = x.tile; ng.append(y)
            out.append(ng)
        return out

    if c.B:
        p("s_mov_b32", sHEAD, 0)
        stamp(p, 2)
        hl = p.uid("head")
        p.label(hl)
        zero_t4()
        p.add(qk_mfmas(0, 0))
        cy = emit_step(p, c, *args(0), True, False, slow_sites, 0, [])
        lab = p.uid("loop")
        p("s_mov_b32", sLOOP, 0)
        p.label(lab)
        cy1 = emit_step(p, c, *args(1), False, False, slow_sites, 1, cy)
        cy2 = emit_step(p, c, *args(2), False, False, slow_sites, 2, cy1)
        p("s_add_u32", sLOOP, sLOOP, 1); p("s_cmp_lt_u32", sLOOP, 3)
        p("s_cbranch_scc1", lab).tag = ("loop", 3)
        emit_step(p, c, *args(7), False, True, slow_sites, 7, copy_groups(cy2))
        emit_drain(p, c, (7 * 5) & 1)
        fin = p.uid("fin")
        if STAMP["on"]:
            p("s_cmp_eq_u32", sHEAD, 1)
            p("s_cbranch_scc0", fin + "a").tag = ("headsel", 0)
            stamp(p, 5)
            p("s_branch", fin + "b")
            p.label(fin + "a")
            stamp(p, 3)
            p.label(fin + "b")
        epilogue(p, c, sHEAD, opol)
        p("s_cmp_eq_u32", sHEAD, 1)
        p("s_cbranch_scc1", fin).tag = ("headsel", 1)
        for s in range(4):
            for t in range(5):
                for i in range(4): p("v_accvgpr_mov_b32", Q(s, t)[i], Q2(s, t)[i])
        p("s_mov_b32", sHEAD, 1)
        p("s_barrier")
        stamp(p, 4)
        p("s_branch", hl)
        p.label(fin)
    else:
        zero_t4()
        p.add(qk_mfmas(0, 0))
        stamp(p, 2)
        emit_step(p, c, *args(0), True, False, slow_sites, 0, [])
        lab = p.uid("loop")
        p("s_mov_b32", sLOOP, 0)
        p.label(lab)
        for u in range(4):
            emit_step(p, c, *args(1 + u), False, False, slow_sites, 1 + u, [])
        p("s_add_u32", sLOOP, sLOOP, 1); p("s_cmp_lt_u32", sLOOP, 3)
        p("s_cbranch_scc1", lab).tag = ("loop", 3)
        emit_step(p, c, *args(13), False, False, slow_sites, 13, [])
        emit_step(p, c, *args(14), False, False, slow_sites, 14, [])
        emit_step(p, c, *args(15), False, True, slow_sites, 15, [])
        emit_drain(p, c, (15 * 5) & 1)
        stamp(p, 3); stamp(p, 4); stamp(p, 5)
        epilogue(p, c, 0, opol)


def gen_att_kernel(name, opt=None):
    opt = opt or {}
    p = Prog()
    slowB, slowA = [], []
    p("s_cmp_ge_u32", sWG, 256); p("s_cbranch_scc1", "att_end")
    STAMP["on"] = bool(opt.get("stamp")); STAMP["q"] = opt.get("qstamp")
    EXP.clear(); EXP.update(opt.get("exp", {}))
    stamp(p, 0)
    if STAMP["on"]: p("s_memtime", S(86, 2))
    p("v_lshrrev_b32", V(1), 6, V(0)); p("v_and_b32", vLane, 63, V(0))
    p("v_readfirstlane_b32", sW, V(1))
    p("v_lshlrev_b32", vL16, 4, vLane)
    p("s_and_b32", sJ, sWG, 7); p("s_lshr_b32", sS, sWG, 3)
    if opt.get("map", 0) == 0:
        p("s_and_b32", sB, sS, 7)
        p("s_bfe_u32", sT0, sS, "0x10003"); p("s_lshl_b32", sT0, sT0, 1); p("s_lshl_b32", sH0, sJ, 2); p("s_add_u32", sH0, sH0, sT0)
    else:
        p("s_and_b32", sT0, sJ, 1); p("s_lshl_b32", sT0, sT0, 2); p("s_and_b32", sB, sS, 3); p("s_add_u32", sB, sB, sT0)
        p("s_lshr_b32", sT0, sJ, 1); p("s_lshl_b32", sT0, sT0, 2); p("s_bfe_u32", sT1, sS, "0x20002"); p("s_add_u32", sT0, sT0, sT1)
        p("s_lshl_b32", sH0, sT0, 1)
    p("s_cmp_ge_u32", sS, 16); p("s_cbranch_scc1", "att_A").tag = "isA"
    cB, cA = Cfg("B"), Cfg("A")
    only = opt.get("only")
    if only != "A": attention_path(p, cB, slowB, opt)
    p("s_branch", "att_fin")
    p.label("att_A")
    if only != "B": attention_path(p, cA, slowA, opt)
    p.label("att_fin")
    if opt.get("stamp"):
        p.wait(vm=0)
        stamp(p, 6); p("s_memtime", S(88, 2)); p("s_load_dwordx2", sWS, S(0, 2), 96); p.wait(lgkm=0)
        p("s_sub_u32", S(84), S(88), S(86)); p("s_mov_b32", S(85), 0)
        p("s_lshl_b32", sT0, sWG, 2); p("s_add_u32", sT0, sT0, sW); p("s_lshl_b32", sT0, sT0, 6); p("s_add_u32", sT0, sT0, 16 << 20)
        p("v_mov_b32", V(4), sT0)
        for i in range(16): p("v_mov_b32", V(8 + i), S(70 + i))
        p("v_cmp_eq_u32", VCC, 0, vL16); p("s_and_saveexec_b64", S(62, 2), VCC); p("s_cbranch_execz", "att_end")
        for i in range(0, 16, 4):
            p("global_store_dwordx4", V(4), V(8 + i, 4), sWS, mods=f"offset:{i * 4}")
    p.label("att_end")
    p("s_endpgm")
    emit_slow(p, slowB + slowA)
    for lab, back, fn in RARE:
        p.label(lab); p.nop(4); fn(); p("s_branch", back)
    RARE.clear()
    def mkdec(isA, w):
        def decide(ins, visit):
            tg = ins.tag
            if tg == "isA": return isA
            if tg == "role0": return w != 0
            if isinstance(tg, tuple) and tg[0] == "loop": return visit % tg[1] != 0
            if isinstance(tg, tuple) and tg[0] == "headsel":
                return (visit == 1) if tg[1] == 0 else (visit == 2)
            return False
        return decide
    roles = [(isA, w) for isA in (False, True) for w in range(4)]
    if only == "A": roles = [r for r in roles if r[0]]
    if only == "B": roles = [r for r in roles if not r[0]]
    if not EXP.get("nodma"):
        resolve_needs(p.items, [mkdec(*r) for r in roles], lambda di: 4 if roles[di][0] else 8)
    pad_hazards(p)
    for isA, w in roles:
        n, errs = check_trace(p.items, mkdec(isA, w), name=f"{'A' if isA else 'B'}w{w}")
        for e in errs[:6]: print("TRACE:", e)
    return p, LDS_TOTAL


if __name__ == "__main__":
    import build, sys
    name = "att_kernel"
    import json
    opt = dict(stamp=True)
    if len(sys.argv) > 1: opt.update(json.loads(sys.argv[1]))
    p, lds = gen_att_kernel(name, opt)
    txt = f"; @launch kernel={name} grid=(256,1,1) block=(256,1,1) lds={lds}\n" + '.amdgcn_target "amdgcn-amd-amdhsa--gfx950"\n'
    txt += kernel_text(name, p) + KD.format(name=name, vgpr=512, sgpr=102, acc=256)
    open("att.s", "w").write(txt)
    print(build.build("att.s"), len(txt), "instructions:", sum(1 for i in p.items if isinstance(i, Ins)))
```

```python
import math
from asmlib import *

O_BRANCH = 8 * 32 * 20 * 1024
LDS_TOTAL = 163840
SCR = 131072
CSCALE = math.log2(math.e) / math.sqrt(128.0)


def f2u(x):
    import struct
    return struct.unpack("<I", struct.pack("<f", x))[0]


sWG, sW = S(2), S(3)
sX, sWQ, sK, sVv, sO = S(8, 4), S(12, 4), S(16, 4), S(20, 4), S(24, 4)
sC = S(28)
s24 = S(29)
sRET = S(30, 2)
sROT, sBASE, sN, sOFF, sRING, sLOOP, sHEAD = S(32), S(33), S(34), S(35), S(37), S(38), S(39)
sT0, sT1, sT2, sT3 = S(40), S(41), S(42), S(43)
sK64, sKW = S(44), S(45)
sJ, sS, sB, sH0 = S(46), S(47), S(48), S(49)
sWS = S(50, 2)
sHD, sKG = S(52), S(53)
sTIME = S(54, 2)
sDBG = S(56, 2)


def O(t, dt): return V((t * 8 + dt) * 4, 4)
def Sb(par): return V(160 + 8 * par, 8)
def Pb(par): return V(176 + 4 * par, 4)
def MC(t): return V(184 + t)
vM1, vM2 = V(189), V(190)
def aK(s): return V(191 + s)
def aV(dt): return V(195 + dt)
def vKd(i): return V(203 + i)
def vVd(i): return V(207 + i)
vL16 = V(209)
vLane = V(210)
vT = V(211)
FREE = 212


def Q(s, t): return A((s * 5 + t) * 4, 4)
def Q2(s, t): return A(80 + (s * 5 + t) * 4, 4)
def KF(kt, s): return A(160 + (kt * 4 + s) * 4, 4)
def VF(dt): return A(192 + dt * 4, 4)
def LA(t): return A(224 + t * 4, 4)
ONES = A(244, 4)
SEL1 = A(248, 4)
SEL2 = A(252, 4)


class Cfg:
    def __init__(self, kind):
        self.kind = kind
        self.B = kind == "B"
        self.nslots = 4 if self.B else 8
        self.ipt = 8 if self.B else 4
        self.steps = 8 if self.B else 16
        self.W = [16384, 49152, 81920, 114688] if self.B else [32768, 49152, 98304, 114688]
        self.X = [SCR + 5120 * i for i in range(4)]


def srd_from(p, dst, lo, hi, off_s, size):
    if off_s is not None:
        p("s_add_u32", dst[0], lo, off_s); p("s_addc_u32", dst[1], hi, 0)
        p("s_and_b32", dst[1], dst[1], "0xffff")
    else:
        p("s_mov_b32", dst[0], lo); p("s_and_b32", dst[1], hi, "0xffff")
    p("s_mov_b32", dst[2], size); p("s_mov_b32", dst[3], "0x20000")


STAMP = {"on": False}
def stamp(p, i):
    if STAMP["on"]:
        p("s_memrealtime", S(70 + 2 * i, 2))


def calc_off(p, c):
    if c.B:
        p("s_add_u32", sT0, sN, sROT); p("s_and_b32", sT0, sT0, 7); p("s_lshl_b32", sT0, sT0, 15)
        p("s_lshr_b32", sT1, sN, 3); p("s_lshl_b32", sT1, sT1, 18)
    else:
        p("s_add_u32", sT0, sN, sROT); p("s_and_b32", sT0, sT0, 15); p("s_lshl_b32", sT0, sT0, 14)
        p("s_lshr_b32", sT1, sN, 4); p("s_lshl_b32", sT1, sT1, 18)
    p("s_add_u32", sT0, sT0, sT1); p("s_add_u32", sOFF, sT0, sBASE); p("s_add_u32", sN, sN, 1)


EXP = {}
def dma_tile(c, kind, slot, tag, pol="nt"):
    L = []
    if EXP.get("nodma"): return L
    srd = sK if kind == "K" else sVv
    for half in range(c.ipt // 4):
        L.append(mk("s_add_u32", M0, sRING, slot * 8192 + half * 4096))
        if half:
            L.append(mk("s_add_u32", sT2, sOFF, 4096)); so = sT2
        else:
            L.append(mk("s_nop", 0)); so = sOFF
        for i in range(4):
            vo = vKd(i) if kind == "K" else vVd(i & 1)
            d = mk("buffer_load_dwordx4", vo, srd, so, mods=f"offen offset:{i * 1024} {pol} lds", tag=tag)
            d.tile = kind
            L.append(d)
    return L


def dma_groups(c, kind, slot, tag):
    out, g = [], []
    for x in dma_tile(c, kind, slot, tag):
        g.append(x)
        if x.kind == "vmem": out.append(g); g = []
    return out


def k_reads(slot, tag):
    L = []
    if EXP.get("noreads"): return [mk("s_nop", 0) for _ in range(8)]
    for s in range(4):
        for kt in range(2):
            i = mk("ds_read_b128", KF(kt, s), aK(s), mods=f"offset:{slot * 8192 + kt * 4096}")
            i.ldsuse = {tag}
            L.append(i)
    return L


def v_reads(slot, dt, tag):
    L = []
    if EXP.get("noreads"): return L
    for h in range(2):
        i = mk("ds_read_b64_tr_b16", VF(dt).sub(2 * h, 2), aV(dt), mods=f"offset:{slot * 8192 + h * 4096}")
        i.ldsuse = {tag}
        L.append(i)
    return L


MF = "v_mfma_f32_16x16x32_bf16"


def qk_mfmas(t, par):
    L = []
    for s in range(4):
        for kt in range(2):
            d = Sb(par).sub(4 * kt, 4)
            L.append(mk(MF, d, KF(kt, s), Q(s, t), 0 if s == 0 else d))
    return L


def pv_mfmas(t, par, first=False):
    L = []
    for dt in range(8):
        L.append(mk(MF, O(t, dt), VF(dt), Pb(par), 0 if first else O(t, dt)))
    L.append(mk(MF, LA(t), ONES, Pb(par), 0 if first else LA(t)))
    return L


def sm_valu(p, t, par, first, slow_sites):
    x = Sb(par)
    L = []
    if first:
        L.append(mk("v_max3_f32", vM1, x[0], x[1], x[2])); L.append(mk("v_max3_f32", vM2, x[3], x[4], x[5]))
        L.append(mk("v_max3_f32", vM1, vM1, x[6], x[7])); L.append(mk("v_max_f32", vM1, vM1, vM2))
        L.append(mk("v_mov_b32", vM2, vM1)); L.append(mk("v_permlane32_swap_b32", vM1, vM2)); L.append(mk("v_max_f32", vM1, vM1, vM2))
        L.append(mk("v_mov_b32", vM2, vM1)); L.append(mk("v_permlane16_swap_b32", vM1, vM2)); L.append(mk("v_max_f32", vM1, vM1, vM2))
        L.append(mk("v_mul_f32", vM1, sC, vM1))
        L.append(mk("v_add_f32", vM2, "0x41800000", vM1))
        L.append(mk("v_cmp_gt_f32", VCC, Abs(vM2), s24))
        L.append(mk("v_cndmask_b32", MC(t), 0, vM1))
        for i in range(8): L.append(mk("v_fma_f32", x[i], x[i], sC, Neg(MC(t))))
    else:
        for i in range(8): L.append(mk("v_fma_f32", x[i], x[i], sC, Neg(MC(t))))
        L.append(mk("v_max3_f32", vM1, x[0], x[1], x[2])); L.append(mk("v_max3_f32", vM2, x[3], x[4], x[5]))
        L.append(mk("v_max3_f32", vM1, vM1, x[6], x[7])); L.append(mk("v_max_f32", vM1, vM1, vM2))
        L.append(mk("v_cmp_lt_f32", VCC, "0x41000000", vM1))
        stub = p.uid("stub"); back = p.uid("back")
        br = mk("s_cbranch_vccnz", stub)
        L.append(br); L.append(Label(back))
        slow_sites.append((stub, back, t, par))
    if not EXP.get("noexp"):
        for i in range(8): L.append(mk("v_exp_f32", x[i], x[i]))
    for i in range(4): L.append(mk("v_cvt_pk_bf16_f32", Pb(par)[i], x[2 * i], x[2 * i + 1]))
    return L


def icost(x):
    if isinstance(x, Label): return 0
    if x.kind == "trans": return 8
    if x.kind == "mfma": return 8
    return 4


def merge(mf, va, dm=()):
    n = len(mf)
    place = {}
    for lo, hi, g in dm:
        place.setdefault((lo, hi), []).append(g)
    at = [[] for _ in range(n)]
    for (lo, hi), gs in place.items():
        for k, g in enumerate(gs):
            at[min(n - 1, lo + ((2 * k + 1) * (hi - lo + 1)) // (2 * len(gs)))].append(g)
    side = [sum(icost(x) for x in mf[i] if x.kind != "mfma") + sum(icost(x) for g in at[i] for x in g) for i in range(n)]
    total = sum(side) + sum(icost(x) for x in va)
    out, vi, acc = [], 0, 0
    for i in range(n):
        out.extend(mf[i])
        for g in at[i]: out.extend(g)
        acc += side[i]
        target = total * (i + 1) / n
        while vi < len(va) and (acc + icost(va[vi]) / 2 <= target or isinstance(va[vi], Label)):
            out.append(va[vi]); acc += icost(va[vi]); vi += 1
    out.extend(va[vi:])
    return out


def emit_step(p, c, n_par, slotK_next, slotV, dmaV_slot, dmaK_slot, first, last, slow_sites, tagn, carry, extra4=None):
    left = []
    if c.B:
        vg = dma_groups(c, "V", dmaV_slot, f"V{tagn + 2}")
        tmp = Prog(); calc_off(tmp, c)
        kg = dma_groups(c, "K", dmaK_slot, f"K{tagn + 3}")
        if kg: kg[0] = tmp.items + kg[0]
    else:
        la = EXP.get("la", 4)
        tmp = Prog(); calc_off(tmp, c)
        kg = dma_groups(c, "K", dmaK_slot, f"K{tagn + la}")
        if kg: kg[0] = tmp.items + kg[0]
        vg = dma_groups(c, "V", dmaV_slot, f"V{tagn + la}")
    for t in range(5):
        par = (n_par + t) & 1
        mf, dm = [], []
        va = sm_valu(p, t, par, first, slow_sites)
        if t < 4:
            qk = qk_mfmas(t + 1, par ^ 1)
            if t == 3:
                pre = [mkneed("K")]
                if not c.B: pre.append(mk("s_barrier"))
                kr = k_reads(slotK_next, f"K{tagn + 1}")
                mf.append(pre + [qk[0], kr[0]])
                for i in range(1, 8): mf.append([qk[i], kr[i]])
            else:
                for m in qk: mf.append([m])
        elif not last:
            qk = qk_mfmas(0, par ^ 1)
            mf.append([mkwait(lgkm=0), qk[0]])
            for m in qk[1:]: mf.append([m])
        else:
            mf.append([mkwait(lgkm=0)])
        nq = len(mf)
        if t == 0:
            pre = [mkneed("V")]
            if not c.B: pre.append(mk("s_barrier"))
            if first:
                mf.append(pre)
                for dt in range(8): mf.append(v_reads(slotV, dt, f"V{tagn}") or [mk("s_nop", 0)])
            else:
                pv = pv_mfmas(4, par ^ 1)
                mf.append(pre + [pv[0]] + v_reads(slotV, 0, f"V{tagn}"))
                for dt in range(1, 8): mf.append([pv[dt]] + v_reads(slotV, dt, f"V{tagn}"))
                mf.append([pv[8]])
        else:
            pv = pv_mfmas(t - 1, par ^ 1, first=first)
            if t == 1:
                mf.append([mkwait(lgkm=0), pv[0]])
                for m in pv[1:]: mf.append([m])
            else:
                for m in pv: mf.append([m])
        n = len(mf)
        if c.B:
            mode = EXP.get("dmode", 1)
            if mode == 0:
                if t == 0: dm = [(0, nq - 1, g) for g in carry]
                elif t == 1: dm = [(nq, n - 1, g) for g in vg[0:2]]
                elif t == 2: dm = [(0, n - 1, g) for g in vg[2:6]]
                elif t == 3: dm = [(nq, n - 1, g) for g in vg[6:8]]
                else:
                    if last: dm = [(0, n - 1, g) for g in kg]
                    else: dm = [(0, n - 1, g) for g in kg[0:4]]; left = kg[4:8]
            elif mode == 1:
                if t == 1: dm = [(nq, n - 1, g) for g in vg[0:4]]
                elif t == 2: dm = [(0, nq - 1, g) for g in vg[4:8]]
                elif t == 4: dm = [(0, n - 1, g) for g in kg]
            else:
                if t == 1: dm = [(nq, n - 1, g) for g in vg]
                elif t == 4: dm = [(0, min(n - 1, 8), g) for g in kg]
        else:
            mode = EXP.get("dmode", 1)
            if mode == 0:
                if t == 0: dm = [(nq, n - 1, g) for g in kg[0:2]]
                elif t == 1: dm = [(0, n - 1, g) for g in kg[2:4]]
                elif t == 3: dm = [(0, n - 1, g) for g in vg[0:2]]
                elif t == 4: dm = [(0, n - 1, g) for g in vg[2:4]]
            else:
                ks_, vs_ = EXP.get("aks", 0), EXP.get("avs", 3)
                if t == ks_: dm = [((nq if t == 0 else 0), n - 1, g) for g in kg]
                if t == vs_: dm = [(0, (nq - 1 if t == 3 else n - 1), g) for g in vg]
        if t == 0 and extra4 is not None: extra4()
        p.add(merge(mf, va, dm))
    return left


def emit_drain(p, c, n_par, first_is_only=False):
    par = (n_par + 4) & 1
    p.add(pv_mfmas(4, par))


def emit_slow(p, slow_sites):
    need = set()
    for stub, back, t, par in slow_sites:
        p.label(stub)
        p("s_call_b64", sRET, f"slow_{t}_{par}")
        p("s_branch", back)
        need.add((t, par))
    for t, par in sorted(need):
        x = Sb(par)
        p.label(f"slow_{t}_{par}")
        p.nop(16)
        p("v_mov_b32", vM2, vM1); p.nop(2); p("v_permlane32_swap_b32", vM1, vM2); p.nop(2); p("v_max_f32", vM1, vM1, vM2)
        p("v_mov_b32", vM2, vM1); p.nop(2); p("v_permlane16_swap_b32", vM1, vM2); p.nop(2); p("v_max_f32", vM1, vM1, vM2)
        p("v_max_f32", vM1, 0, vM1)
        p("v_add_f32", MC(t), MC(t), vM1)
        for i in range(8): p("v_sub_f32", x[i], x[i], vM1)
        p("v_sub_f32", vM2, 0, vM1); p("v_exp_f32", vM2, vM2); p.nop(2)
        for dt in range(8):
            for i in range(4): p("v_mul_f32", O(t, dt)[i], O(t, dt)[i], vM2)
        for i in range(4):
            p("v_accvgpr_read_b32", vM1, LA(t)[i]); p.nop(1); p("v_mul_f32", vM1, vM1, vM2); p.nop(1)
            p("v_accvgpr_write_b32", LA(t)[i], vM1)
        p.nop(8)
        p("s_setpc_b64", sRET)


def accQ(sl, half, t): return V(((sl * 2 + half) * 5 + t) * 4, 4)
def AF(buf, sl, half): return V(80 + buf * 16 + (sl * 2 + half) * 4, 4)
def BF(buf, t): return V(112 + buf * 20 + t * 4, 4)
def vWq(i): return V(152 + i)
vXd = V(156)
def aW(hi, sl): return V(157 + hi * 2 + sl)
vXr = V(163)
vQa, vQb, vQc = V(164), V(165), V(166)


def q_setup(p, c):
    l = vLane
    p("v_lshrrev_b32", V(170), 5, l); p("v_and_b32", V(171), 31, l)
    for i in range(4):
        p("v_lshlrev_b32", V(172), 2, V(170))
        if i & 1: p("v_add_u32", V(172), 8, V(172))
        p("v_xor_b32", V(172), V(172), V(171)); p("v_lshlrev_b32", V(172), 4, V(172))
        p("v_lshlrev_b32", V(173), 13, V(170)); p("v_add_u32", V(172), V(172), V(173))
        p("v_add_u32", vWq(i), i * 15360, V(172))
    p("v_lshrrev_b32", V(170), 2, l); p("v_lshrrev_b32", V(171), 4, l); p("v_sub_u32", V(171), 0, V(171))
    p("v_xor_b32", V(171), V(171), l); p("v_and_b32", V(171), 3, V(171)); p("v_lshlrev_b32", V(171), 4, V(171))
    p("v_mul_u32_u24", V(170), 1152, V(170)); p("v_add_u32", vXd, V(170), V(171))


def q_setup2(p, c):
    X = c.X
    l = vLane
    p("v_lshrrev_b32", V(170), 4, l)
    p("v_bfe_u32", V(171), l, 2, 2)
    p("v_and_b32", V(172), 3, l)
    p("v_lshlrev_b32", V(173), 3, V(170)); p("v_add_u32", V(173), V(173), V(171))
    p("v_lshlrev_b32", V(173), 9, V(173))
    for sl in range(2):
        p("s_lshl_b32", sT0, sW, 3); p("s_add_u32", sT0, sT0, 4 * sl)
        p("v_add_u32", V(175), sT0, V(172))
        p("v_lshlrev_b32", V(176), 2, V(171)); p("v_xor_b32", V(175), V(175), V(176))
        p("v_lshlrev_b32", V(175), 4, V(175)); p("v_add_u32", aW(0, sl), V(175), V(173))
        p("v_add_u32", aW(1, sl), 65536, aW(0, sl))
    p("v_and_b32", V(171), 15, l); p("v_lshrrev_b32", V(172), 2, V(171)); p("v_sub_u32", V(172), 0, V(172))
    p("v_xor_b32", V(172), V(172), V(170)); p("v_and_b32", V(172), 3, V(172)); p("v_lshlrev_b32", V(172), 4, V(172))
    p("v_lshlrev_b32", V(171), 6, V(171)); p("v_add_u32", V(171), V(171), V(172)); p("v_add_u32", vXr, X[0], V(171))
    for r in range(80): p("v_mov_b32", V(r), 0)


def own_prefetch(p, c, tiles):
    p("s_mov_b32", sN, 0)
    for kind, n in tiles:
        if kind == "K": calc_off(p, c)
        p.add(dma_tile(c, kind, (2 * n + (kind == "V")) % c.nslots, f"{kind}{n}"))


def l2_prefetch(p, c, qpol):
    l = vLane
    sP, sQ = S(92, 4), S(96, 4)
    p("v_lshlrev_b32", V(169), 7, l)

    def part(xoff, woff, share, nshare):
        p("s_load_dwordx2", S(60, 2), S(0, 2), xoff); p("s_load_dwordx2", S(62, 2), S(0, 2), woff)
        p.wait(lgkm=0)
        srd_from(p, sP, S(60), S(61), None, 737280)
        p("s_lshl_b32", sT0, sJ, 10); srd_from(p, sQ, S(62), S(63), sT0, 0); p("s_sub_u32", sQ[2], 4718592, sT0)
        rows = 32 // nshare
        p("s_mul_i32", sT0, share, rows); p("s_lshl_b32", sT1, sW, 5); p("s_add_u32", sT0, sT0, sT1); p("s_lshl_b32", sT0, sT0, 13)
        for k in range(5):
            for h in range(rows):
                if h: p("s_add_u32", sT1, sT0, h * 8192); so = sT1
                else: so = sT0
                d = p("buffer_load_dwordx4", V(232, 4), vL16, sQ, so, mods=f"offen {qpol}"); d.defs = []
            p("s_add_u32", sT0, sT0, 4 * 262144)
        per = 737280 // (nshare * 4)
        p("s_lshl_b32", sT0, share, 2); p("s_add_u32", sT0, sT0, sW); p("s_mul_i32", sT0, sT0, per)
        for i in range((per + 8191) // 8192):
            d = p("buffer_load_dword", V(229), V(169), sP, sT0, mods=f"offen {qpol}"); d.defs = []
            p("s_add_u32", sT0, sT0, 8192)
    part(40, 64, sS, 32)
    if not c.B:
        p("s_sub_u32", sT3, sS, 16)
        part(0, 24, sT3, 16)


def q_phase(p, c, opt):
    W, X = c.W, c.X
    qpol = opt.get("qpol", "")
    NST = 4
    sGW, sXW, sWL = S(57), S(58), S(59)

    def stage_dma(role, k):
        st, tag = k % NST, f"Q{k}"
        L = []
        g = [mk("s_add_u32", M0, sWL, W[st]), mk("s_add_u32", sT0, sKW, sGW)]
        for i in range(4):
            g.append(mk("buffer_load_dwordx4", vWq(i), sWQ, sT0, mods=f"offen offset:{i * 1024} {qpol} lds", tag=tag))
            L.append(g); g = []
        g = [mk("s_lshr_b32", sT1, sWL, 2), mk("s_add_u32", M0, sT1, X[st]), mk("s_add_u32", sT0, sK64, sXW),
             mk("buffer_load_dwordx4", vXd, sX, sT0, mods=f"offen {qpol} lds", tag=tag)]
        L.append(g)
        if role == 0:
            L.append([mk("s_mov_b32", M0, X[st] + 4096), mk("s_add_u32", sT0, sK64, 4 * 18432),
                      mk("buffer_load_dwordx4", vXd, sX, sT0, mods=f"offen {qpol} lds", tag=tag)])
        L[-1] += [mk("s_add_u32", sK64, sK64, 64), mk("s_add_u32", sKW, sKW, 262144)]
        return L

    def reads(k):
        st, buf = k % NST, k & 1
        hi, lo = W[st] // 65536, W[st] % 65536
        L = []
        for sl in range(2):
            for half in range(2):
                for kk in range(2):
                    i = mk("ds_read_b64_tr_b16", AF(buf, sl, half).sub(2 * kk, 2), aW(hi, sl), mods=f"offset:{lo + kk * 2048 + half * 8}")
                    i.ldsuse = {f"Q{k}"}; L.append([i])
        for t in range(5):
            i = mk("ds_read_b128", BF(buf, t), vXr, mods=f"offset:{st * 5120 + t * 1024}")
            i.ldsuse = {f"Q{k}"}; L.append([i])
        return L

    def mfmas(k):
        buf = k & 1
        return [mk(MF, accQ(sl, half, t), AF(buf, sl, half), BF(buf, t), accQ(sl, half, t))
                for t in range(5) for sl in range(2) for half in range(2)]

    def kstep(role, k, vm, dma, rd=True, mf=True):
        p.wait(vm=vm)
        if STAMP["on"] and STAMP.get("q"):
            p("s_memrealtime", S(90, 2)); p.wait(lgkm=0); p("v_writelane_b32", V(250), S(90), k)
        p("s_barrier")
        fill = dma + (reads(k) if rd else [])
        if mf:
            m = mfmas(k - 1)
            n, nf, fi = opt.get("qspread", 14), len(fill), 0
            for i, x in enumerate(m):
                want = min(nf, ((i + 1) * nf + n - 1) // n)
                while fi < want:
                    p.add(fill[fi]); fi += 1
                p.add(x)
        else:
            for g in fill: p.add(g)
        p.wait(lgkm=0)

    def tile_groups(kind, slot, tag):
        return dma_groups(c, kind, slot, tag)

    done = p.uid("qdone"); r1 = p.uid("qr1")
    q_setup(p, c)
    p("s_mov_b32", sK64, 0); p("s_mov_b32", sKW, 0)
    p("s_lshl_b32", sGW, sW, 16); p("s_mul_i32", sXW, sW, 18432); p("s_lshl_b32", sWL, sW, 12)
    if opt.get("l2pf", True): l2_prefetch(p, c, qpol)
    att_setup(p, c)
    if not c.B: own_prefetch(p, c, [("K", 0), ("V", 0), ("K", 1), ("V", 1)][:2 * min(2, EXP.get("la", 4))])
    p("s_cmp_eq_u32", sW, 0); p("s_cbranch_scc0", r1).tag = "role0"
    for role in range(2):
        n = 6 if role == 0 else 5
        if role == 1: p.label(r1)
        for k in range(3):
            for g in stage_dma(role, k): p.add(g)
        q_setup2(p, c)
        kstep(role, 0, 2 * n, stage_dma(role, 3), mf=False)
        if STAMP["on"] and STAMP.get("q"):
            for k in range(1, 13): kstep(role, k, 2 * n, stage_dma(role, k + 3))
        else:
            lab = p.uid("qloop")
            p("s_mov_b32", sLOOP, 0)
            p.label(lab)
            for k in range(1, 5): kstep(role, k, 2 * n, stage_dma(role, k + 3))
            p("s_add_u32", sLOOP, sLOOP, 1); p("s_cmp_lt_u32", sLOOP, 3)
            p("s_cbranch_scc1", lab).tag = ("loop", 3)
        kstep(role, 13, 2 * n, stage_dma(role, 16))
        kstep(role, 14, 2 * n, stage_dma(role, 17))
        if c.B:
            p("s_mov_b32", sN, 0); calc_off(p, c)
            kg, vg = tile_groups("K", 0, "K0"), tile_groups("V", 1, "V0")
            kstep(role, 15, 2 * n, kg)
            kstep(role, 16, n + 8, vg)
            kstep(role, 17, 16, [])
        else:
            kstep(role, 15, 2 * n, [])
            kstep(role, 16, n, [])
            kstep(role, 17, 0, [])
        p.add(mfmas(17))
        if role == 0: p("s_branch", done)
    p.label(done)
    p("s_barrier")
    pk = V(80, 40)
    for sl in range(2):
        for t in range(5):
            d = pk.sub((sl * 5 + t) * 4, 4)
            for half in range(2):
                a = accQ(sl, half, t)
                p("v_cvt_pk_bf16_f32", d[2 * half], a[0], a[1]); p("v_cvt_pk_bf16_f32", d[2 * half + 1], a[2], a[3])
    if c.B:
        p("s_mul_i32", sT0, sW, 32768); p("s_add_u32", sT0, sT0, 24576)
    else:
        p("s_lshr_b32", sT0, sW, 1); p("s_lshl_b32", sT0, sT0, 16); p("s_and_b32", sT1, sW, 1); p("s_lshl_b32", sT1, sT1, 13)
        p("s_add_u32", sT0, sT0, sT1); p("s_add_u32", sT0, sT0, 49152)
    p("v_add_u32", vQa, sT0, vL16)
    p("s_lshl_b32", sT1, sW, 11); p("s_add_u32", sT1, sT1, SCR); p("v_add_u32", vQb, sT1, vL16)
    for i in range(10):
        if i < 8: p("ds_write_b128", vQa, pk.sub(4 * i, 4), mods=f"offset:{i * 1024}")
        else: p("ds_write_b128", vQb, pk.sub(4 * i, 4), mods=f"offset:{(i - 8) * 1024}")
    p.wait(lgkm=0); p("s_barrier")

    def rd(dst, wsrc, i, baseZ, offZ, baseY, offY):
        if i < 8: p("ds_read_b128", dst, baseZ, mods=f"offset:{offZ + i * 1024}")
        else: p("ds_read_b128", dst, baseY, mods=f"offset:{offY + (i - 8) * 1024}")
    if c.B:
        p("v_add_u32", vQa, 65536, vL16); p("v_add_u32", vQb, SCR, vL16)
        for wsrc in range(4):
            base = vL16 if wsrc < 2 else vQa
            offZ = (wsrc & 1) * 32768 + 24576
            for i in range(10):
                s, t = 2 * (wsrc & 1) + i // 5, i % 5
                rd(Q(s, t) if wsrc < 2 else Q2(s, t), wsrc, i, base, offZ, vQb, wsrc * 2048)
    else:
        p("s_lshl_b32", sT0, sHD, 16); p("v_add_u32", vQa, sT0, vL16)
        p("s_lshl_b32", sT0, sHD, 12); p("s_add_u32", sT0, sT0, SCR); p("v_add_u32", vQb, sT0, vL16)
        for e in range(2):
            for i in range(10):
                s, t = 2 * e + i // 5, i % 5
                rd(Q(s, t), e, i, vQa, 49152 + e * 8192, vQb, e * 2048)
    p.wait(lgkm=0)
    p("s_barrier")


def att_setup(p, c):
    l = vLane
    F = FREE
    p("v_lshrrev_b32", V(F), 4, l); p("v_and_b32", V(F + 1), 15, l)
    p("v_xor_b32", V(F + 2), V(F), V(F + 1)); p("v_lshlrev_b32", V(F + 3), 8, V(F))
    for i in range(4):
        p("v_xor_b32", V(F + 4), 4 * i, V(F + 2)); p("v_lshlrev_b32", V(F + 4), 4, V(F + 4)); p("v_add_u32", vKd(i), V(F + 3), V(F + 4))
    for i in range(2):
        p("v_lshlrev_b32", V(F + 4), 1, V(F)); p("v_add_u32", V(F + 4), 8 * i, V(F + 4)); p("v_xor_b32", V(F + 4), V(F + 4), V(F + 1))
        p("v_lshlrev_b32", V(F + 4), 4, V(F + 4)); p("v_add_u32", vVd(i), V(F + 3), V(F + 4))


def att_setup2(p, c):
    l = vLane
    F = FREE
    p("v_lshrrev_b32", V(F), 4, l); p("v_and_b32", V(F + 1), 15, l)
    if c.B: p("s_lshl_b32", sT3, sW, 15)
    else: p("s_lshl_b32", sT3, sKG, 16)
    p("v_lshlrev_b32", V(F + 3), 8, V(F + 1)); p("v_add_u32", V(F + 3), sT3, V(F + 3))
    for s in range(4):
        p("v_add_u32", V(F + 4), 4 * s, V(F)); p("v_xor_b32", V(F + 4), V(F + 4), V(F + 1))
        p("v_lshlrev_b32", V(F + 4), 4, V(F + 4)); p("v_add_u32", aK(s), V(F + 3), V(F + 4))
    p("v_lshrrev_b32", V(F + 2), 2, l); p("v_lshlrev_b32", V(F + 3), 8, V(F + 2)); p("v_add_u32", V(F + 3), sT3, V(F + 3))
    p("v_and_b32", V(F + 4), 3, l); p("v_lshlrev_b32", V(F + 4), 3, V(F + 4)); p("v_add_u32", V(F + 3), V(F + 3), V(F + 4))
    p("v_and_b32", V(F + 2), 7, V(F + 2))
    if c.B: p("s_lshl_b32", sT1, sW, 1)
    else: p("s_lshl_b32", sT1, sKG, 2)
    for dt in range(8):
        p("s_add_u32", sT0, sT1, dt); p("s_and_b32", sT0, sT0, 7)
        p("v_xor_b32", V(F + 4), sT0, V(F + 2)); p("v_lshlrev_b32", V(F + 4), 5, V(F + 4)); p("v_add_u32", aV(dt), V(F + 3), V(F + 4))
    p("v_mov_b32", V(F + 4), "0x3f803f80")
    for i in range(4): p("v_accvgpr_write_b32", ONES[i], V(F + 4))
    p("v_lshrrev_b32", V(F + 2), 2, V(F + 1))
    p("v_and_b32", V(F + 3), 3, l)
    p("v_cmp_eq_u32", VCC, V(F + 2), V(F))
    p("v_cndmask_b32", V(F + 5), 7, V(F + 3))
    p("v_mov_b32", V(F + 6), 0); p("v_mov_b32", V(F + 7), 0)
    p("v_mov_b32", V(F + 8), "0x3f80"); p("v_mov_b32", V(F + 9), "0x3f800000")
    p("v_cmp_eq_u32", VCC, 0, V(F + 5)); p("v_cndmask_b32", V(F + 6), V(F + 6), V(F + 8))
    p("v_cmp_eq_u32", VCC, 1, V(F + 5)); p("v_cndmask_b32", V(F + 6), V(F + 6), V(F + 9))
    p("v_cmp_eq_u32", VCC, 2, V(F + 5)); p("v_cndmask_b32", V(F + 7), V(F + 7), V(F + 8))
    p("v_cmp_eq_u32", VCC, 3, V(F + 5)); p("v_cndmask_b32", V(F + 7), V(F + 7), V(F + 9))
    p("v_mov_b32", V(F + 8), 0)
    p("v_accvgpr_write_b32", SEL1[0], V(F + 6)); p("v_accvgpr_write_b32", SEL1[1], V(F + 7))
    p("v_accvgpr_write_b32", SEL1[2], V(F + 8)); p("v_accvgpr_write_b32", SEL1[3], V(F + 8))
    p("v_accvgpr_write_b32", SEL2[0], V(F + 8)); p("v_accvgpr_write_b32", SEL2[1], V(F + 8))
    p("v_accvgpr_write_b32", SEL2[2], V(F + 6)); p("v_accvgpr_write_b32", SEL2[3], V(F + 7))


def epilogue(p, c, sHead, opol="", fused=False, after_first_barrier=None, before_first_barrier=None):
    F = FREE
    B = c.B
    nsrc = 3 if B else 1
    own = [0] if B else [0, 1]
    per_t = 12288 if B else 8192
    rounds = [[0, 1], [2, 3], [4]] if B else [[0, 1, 2], [3, 4]]
    stats = SCR + 24576
    vl = [V(F + t) for t in range(5)]
    vq8 = V(F + 5)
    vWr = [V(F + 6 + d) for d in range(3)]
    vSt, vRd = V(F + 9), V(F + 10)
    vSa = [V(F + 11 + d) for d in range(3)]
    st = lambda d, t: V(F + 14 + (d * 5 + t) * 2, 2)
    p.nop(4)
    for t in range(5): p("v_accvgpr_read_b32", vl[t], LA(t)[0])
    p("v_and_b32", vq8, 15, vLane); p("v_lshlrev_b32", vq8, 3, vq8)
    p("s_mul_i32", sT0, sW, 640); p("s_add_u32", sT0, sT0, stats); p("v_add_u32", vM1, sT0, vq8)
    for t in range(5):
        pr = V(F + 14 + 2 * t, 2)
        p("v_mov_b32", pr[0], MC(t)); p("v_mov_b32", pr[1], vl[t])
        p("ds_write_b64", vM1, pr, mods=f"offset:{t * 128}")
    if B:
        for d in range(1, 4):
            p("s_add_u32", sT0, sW, d); p("s_and_b32", sT0, sT0, 3); p("s_mul_i32", sT0, sT0, 3072)
            p("s_add_u32", sT0, sT0, SCR + (d - 1) * 1024); p("v_add_u32", vWr[d - 1], sT0, vL16)
            p("s_sub_u32", sT0, sW, d); p("s_and_b32", sT0, sT0, 3); p("s_mul_i32", sT0, sT0, 640)
            p("s_add_u32", sT0, sT0, stats); p("v_add_u32", vSa[d - 1], sT0, vq8)
        p("s_mul_i32", sT0, sW, 3072); p("s_add_u32", sT0, sT0, SCR); p("v_add_u32", vRd, sT0, vL16)
        p("s_mul_i32", sT0, sW, 5120); p("s_mul_i32", sT1, sHead, 20480); p("s_add_u32", sT0, sT0, sT1)
    else:
        p("s_xor_b32", sT1, sW, 1)
        p("s_lshl_b32", sT0, sT1, 11); p("s_add_u32", sT0, sT0, SCR); p("v_add_u32", vWr[0], sT0, vL16)
        p("s_mul_i32", sT0, sT1, 640); p("s_add_u32", sT0, sT0, stats); p("v_add_u32", vSa[0], sT0, vq8)
        p("s_lshl_b32", sT0, sW, 11); p("s_add_u32", sT0, sT0, SCR); p("v_add_u32", vRd, sT0, vL16)
        p("s_mul_i32", sT0, sKG, 10240); p("s_mul_i32", sT1, sHD, 20480); p("s_add_u32", sT0, sT0, sT1)
    p("v_add_u32", vSt, sT0, vL16)

    sends = [(d, vWr[d - 1], 0) for d in range(1, 4)] if B else [(2, vWr[0], 0), (3, vWr[0], 1024)]

    def pack(t):
        for f, _, _ in sends:
            a, b = O(t, 2 * f), O(t, 2 * f + 1)
            p("v_cvt_pk_bf16_f32", a[0], a[0], a[1]); p("v_cvt_pk_bf16_f32", a[1], a[2], a[3])
            p("v_cvt_pk_bf16_f32", a[2], b[0], b[1]); p("v_cvt_pk_bf16_f32", a[3], b[2], b[3])

    def write(rts):
        for ti, t in enumerate(rts):
            for f, va, off in sends:
                p("ds_write_b128", va, O(t, 2 * f), mods=f"offset:{ti * per_t + off}")

    for t in rounds[0]: pack(t)
    write(rounds[0])
    for r in rounds[1:]:
        for t in r: pack(t)
    if before_first_barrier: before_first_barrier()
    p.wait(lgkm=0); p("s_barrier")
    if after_first_barrier: after_first_barrier()
    for d in range(nsrc):
        for t in range(5): p("ds_read_b64", st(d, t), vSa[d], mods=f"offset:{t * 128}")
        if d == 1: p.wait(lgkm=0)
    p.wait(lgkm=0)
    x = Sb(0); y = Sb(1)
    first = True
    for t in range(5):
        for d in range(nsrc):
            p("v_sub_f32", x[d], st(d, t)[0], MC(t))
        if nsrc == 3:
            p("v_max3_f32", x[0], Abs(x[0]), Abs(x[1]), Abs(x[2]))
            if first: p("v_mov_b32", x[4], x[0])
            else: p("v_max_f32", x[4], x[4], x[0])
        else:
            if first: p("v_max_f32", x[4], Abs(x[0]), Abs(x[0]), vop3=True)
            else: p("v_max_f32", x[4], Abs(x[0]), x[4], vop3=True)
        first = False
    gen, join = p.uid("epi_gen"), p.uid("epi_join")
    p("v_cmp_lt_f32", VCC, 0, x[4])
    p("s_cbranch_vccnz", gen).tag = "rare"

    src = lambda k, d: V(F + 14 + (k & 1) * 12 + 4 * d, 4)

    def store(t, f, k):
        a, b = O(t, 2 * f), O(t, 2 * f + 1)
        if fused:
            p("v_cvt_pk_bf16_f32", a[0], a[0], a[1]); p("v_cvt_pk_bf16_f32", a[1], a[2], a[3])
            p("v_cvt_pk_bf16_f32", a[2], b[0], b[1]); p("v_cvt_pk_bf16_f32", a[3], b[2], b[3])
            return
        r = Pb(k & 1)
        p("v_cvt_pk_bf16_f32", r[0], a[0], a[1]); p("v_cvt_pk_bf16_f32", r[1], a[2], a[3])
        p("v_cvt_pk_bf16_f32", r[2], b[0], b[1]); p("v_cvt_pk_bf16_f32", r[3], b[2], b[3])
        off = t * 1024 + f * 5120
        if off > 4095:
            p("s_mov_b32", sT1, off)
            p("buffer_store_dwordx4", r, vSt, sO, sT1, mods=f"offen {opol}")
        else:
            p("buffer_store_dwordx4", r, vSt, sO, 0, mods=f"offen offset:{off} {opol}")

    def process(general):
        z = lambda d, t: V(128 + d * 5 + t) if False else None
        if not general:
            for t in range(5):
                p("v_add_f32", x[t], vl[t], st(0, t)[1])
                for d in range(1, nsrc): p("v_add_f32", x[t], x[t], st(d, t)[1])
            for t in range(5): p("v_rcp_f32", y[t], x[t])
        else:
            for t in range(5):
                p("v_max_f32", x[0], MC(t), st(0, t)[0])
                if nsrc == 3: p("v_max3_f32", x[0], x[0], st(1, t)[0], st(2, t)[0])
                p("v_sub_f32", x[1], MC(t), x[0]); p("v_exp_f32", x[1], x[1])
                for d in range(nsrc):
                    p("v_sub_f32", st(d, t)[0], st(d, t)[0], x[0]); p("v_exp_f32", st(d, t)[0], st(d, t)[0])
                p("v_mul_f32", x[2], x[1], vl[t])
                for d in range(nsrc): p("v_fma_f32", x[2], st(d, t)[0], st(d, t)[1], x[2])
                p("v_rcp_f32", x[2], x[2])
                p("v_mul_f32", y[t], x[1], x[2])
                for d in range(nsrc): p("v_mul_f32", st(d, t)[0], st(d, t)[0], x[2])
            for t in range(5):
                for d in range(nsrc): p("v_accvgpr_write_b32", VF(0)[0].__class__("a", 192 + d * 5 + t), st(d, t)[0])
        k = 0
        for ri, rts in enumerate(rounds):
            if ri:
                p("s_barrier")
                write(rts)
                p.wait(lgkm=0); p("s_barrier")
            jobs = [(ti, t, f) for ti, t in enumerate(rts) for f in own]

            def rd(kk, job):
                ti, t, f = job
                for d in range(nsrc):
                    off = ti * per_t + (d * 1024 if B else f * 1024)
                    p("ds_read_b128", src(kk, d), vRd, mods=f"offset:{off}")
            rd(k, jobs[0])
            for ji, job in enumerate(jobs):
                ti, t, f = job
                if ji + 1 < len(jobs):
                    rd(k + 1, jobs[ji + 1]); p.wait(lgkm=nsrc)
                else:
                    p.wait(lgkm=0)
                a, b = O(t, 2 * f), O(t, 2 * f + 1)
                if not general:
                    for d in range(nsrc):
                        p(MF, a, SEL1, src(k, d), a); p(MF, b, SEL2, src(k, d), b)
                    for r in (a, b):
                        for i in range(4): p("v_mul_f32", r[i], r[i], y[t])
                else:
                    for r in (a, b):
                        for i in range(4): p("v_mul_f32", r[i], r[i], y[t])
                    for d in range(nsrc):
                        D1, D2 = x.sub(0, 4), x.sub(4, 4)
                        p(MF, D1, SEL1, src(k, d), 0); p(MF, D2, SEL2, src(k, d), 0)
                        p("v_accvgpr_read_b32", vM1, A(192 + d * 5 + t))
                        for i in range(4):
                            p("v_fma_f32", a[i], D1[i], vM1, a[i]); p("v_fma_f32", b[i], D2[i], vM1, b[i])
                store(t, f, k)
                k += 1

    process(False)
    p("s_branch", join)
    RARE.append((gen, join, lambda: process(True)))
    p.label(join)


RARE = []


sWO, sOUT, sPW, sPR = S(60, 4), S(64, 4), S(24, 4), S(92, 4)
sDBG2 = S(68, 2)
sBR, sGI = S(96), S(97)
WOBASE = 40960
PART_CU = 92 * 1024
OUT_BYTES = 8 * 80 * 1152 * 2


def post_load_ptrs(p, c):
    p("s_load_dwordx2", S(98, 2), S(0, 2), 72 if c.B else 32)
    p("s_load_dwordx4", S(64, 4), S(0, 2), 80)


def post_srds(p, c):
    p("s_mov_b32", sDBG2[0], S(66)); p("s_mov_b32", sDBG2[1], S(67))
    p("s_mov_b32", sT0, S(64)); p("s_mov_b32", sT1, S(65))
    srd_from(p, sOUT, sT0, sT1, None, OUT_BYTES)
    p("s_mul_i32", sT0, sH0, 147456); srd_from(p, sWO, S(98), S(99), sT0, 294912)
    p("s_mov_b32", sBR, 1 if c.B else 0)
    p("s_lshl_b32", sGI, sBR, 3); p("s_add_u32", sGI, sGI, sB)
    p("s_mul_i32", sT0, sGI, 16 * PART_CU); srd_from(p, sPR, sWS[0], sWS[1], sT0, 16 * PART_CU)
    p("s_lshr_b32", sT1, sH0, 1); p("s_mul_i32", sT1, sT1, PART_CU); p("s_add_u32", sT0, sT0, sT1)
    srd_from(p, sPW, sWS[0], sWS[1], sT0, PART_CU)


vD = V(198)
sWOs = S(40 + 4)
sWOl = S(40 + 5)


def post_dma_setup(p):
    l = vLane
    T = lambda i: V(246 + i)
    p("v_lshrrev_b32", T(0), 3, l); p("v_mul_u32_u24", T(0), 1152, T(0))
    p("v_lshrrev_b32", T(1), 4, l); p("v_lshlrev_b32", T(1), 1, T(1)); p("v_xor_b32", T(1), T(1), l); p("v_and_b32", T(1), 7, T(1))
    p("v_lshlrev_b32", T(1), 4, T(1)); p("v_add_u32", vD, T(0), T(1))
    p("s_mul_i32", sWOs, sW, 9216); p("s_lshl_b32", sWOl, sW, 10)


def wo_groups(k, pol=""):
    slot = k % 3
    L = []
    for j in range(9):
        L.append([mk("s_add_u32", M0, sWOl, WOBASE + slot * 36864 + j * 4096), mk("s_add_u32", sT2, sWOs, k * 36864 + j * 128),
                  mk("buffer_load_dwordx4", vD, sWO, sT2, mods=f"offen {pol} lds", tag=f"G{k}")])
    return L


def wo_l2_prefetch(p):
    L = []
    L.append([mk("s_mul_i32", sT3, sB, 36864), mk("s_mul_i32", sT2, sW, 9216), mk("s_add_u32", sT3, sT3, sT2)])
    for j in range(9):
        d = mk("buffer_load_dwordx4", A(0, 4), vL16, sWO, sT3, mods="offen"); d.defs = []
        L[-1].append(d)
        L.append([mk("s_add_u32", sT3, sT3, 1024)])
    return L


def post_phase(p, opt):
    l = vLane
    acc = lambda i, t: V((i * 5 + t) * 4, 4)
    aA = [V(180 + m) for m in range(4)]
    aB = [V(184 + m) for m in range(4)]
    GA = lambda buf, i: A(buf * 36 + 4 * i, 4)
    GB = lambda buf, t: A(72 + buf * 20 + 4 * t, 4)
    T = lambda i: V(246 + i)
    ppol = opt.get("ppol", "sc1")
    for g in wo_groups(2): p.add(g)
    p("v_lshrrev_b32", T(0), 2, l)
    p("v_lshlrev_b32", T(1), 7, T(0)); p("v_and_b32", T(2), 3, l); p("v_lshlrev_b32", T(2), 3, T(2)); p("v_add_u32", T(1), T(1), T(2))
    p("v_bfe_u32", T(0), T(0), 1, 2)
    for m in range(4):
        p("s_add_u32", sT0, sW, m); p("s_and_b32", sT1, sT0, 3); p("s_lshr_b32", sT0, sT0, 2)
        p("s_lshl_b32", sT2, sW, 1); p("s_add_u32", sT0, sT0, sT2); p("s_lshl_b32", sT0, sT0, 12); p("s_add_u32", sT0, sT0, WOBASE)
        p("v_xor_b32", T(3), sT1, T(0)); p("v_lshlrev_b32", T(3), 5, T(3)); p("v_add_u32", T(3), T(3), T(1))
        p("v_add_u32", aA[m], sT0, T(3)); p("v_add_u32", aB[m], 73728, aA[m])
    stamp(p, 7)

    def reads(k):
        slot, buf = k % 3, k & 1
        L = []
        for t in range(5):
            L.append([mk("ds_read_b128", GB(buf, t), vL16, mods=f"offset:{(k * 5 + t) * 1024}")])
        for i in range(9):
            for h in range(2):
                o2 = (i >> 2) * 4096 + h * 2048
                a, off = (aA[i & 3], slot * 36864 + o2) if slot < 2 else (aB[i & 3], o2)
                x = mk("ds_read_b64_tr_b16", GA(buf, i).sub(2 * h, 2), a, mods=f"offset:{off}")
                x.ldsuse = {f"G{k}"}; L.append([x])
        return L

    def mfmas(k):
        buf = k & 1
        return [mk(MF, acc(i, t), GA(buf, i), GB(buf, t), 0 if k == 0 else acc(i, t)) for i in range(9) for t in range(5)]

    vSt = T(0)
    tiles = [(i, t) for i in range(9) for t in range(5)]

    def pack_store(k):
        L = []
        a = acc(*tiles[2 * k])
        L += [mk("v_cvt_pk_bf16_f32", a[0], a[0], a[1]), mk("v_cvt_pk_bf16_f32", a[1], a[2], a[3])]
        if 2 * k + 1 < 45:
            b = acc(*tiles[2 * k + 1])
            L += [mk("v_cvt_pk_bf16_f32", a[2], b[0], b[1]), mk("v_cvt_pk_bf16_f32", a[3], b[2], b[3])]
        else:
            L += [mk("v_mov_b32", a[2], 0), mk("v_mov_b32", a[3], 0)]
        if k * 1024 > 4095:
            L += [mk("s_mov_b32", sT1, k * 1024), mk("buffer_store_dwordx4", a, vSt, sPW, sT1, mods=f"offen {ppol}")]
        else:
            L += [mk("buffer_store_dwordx4", a, vSt, sPW, 0, mods=f"offen offset:{k * 1024} {ppol}")]
        return L

    for k in range(9):
        if k < 8:
            p.wait(vm=18 if k == 0 else (9 if k < 7 else 0))
            p("s_barrier")
            dma = wo_groups(k + 2) if (1 <= k and k + 2 < 8) else []
            fill = dma + reads(k)
        else:
            fill = []
        if k == 8:
            if opt.get("diag"): stamp(p, 2)
            p("s_mul_i32", sT0, sW, 23 * 1024); p("v_add_u32", vSt, sT0, vL16)
            m = mfmas(7)
            done = 0
            for i, x in enumerate(m):
                p.add(x)
                if i % 2 == 1 and i >= 7:
                    p.add(pack_store(done)); done += 1
            stamp(p, 8)
            while done < 23:
                p.add(pack_store(done)); done += 1
        elif k > 0:
            m = mfmas(k - 1)
            n, nf, fi = 36, len(fill), 0
            for i, x in enumerate(m):
                want = min(nf, ((i + 1) * nf + n - 1) // n)
                while fi < want:
                    p.add(fill[fi]); fi += 1
                p.add(x)
            p.wait(lgkm=0)
        else:
            for g in fill: p.add(g)
            p.wait(lgkm=0)
    p.wait(vm=0); p("s_barrier")
    stamp(p, 9)
    skip = p.uid("poll_skip"); loop = p.uid("poll"); out = p.uid("poll_out")
    p("s_cmp_lg_u32", sW, 0); p("s_cbranch_scc1", skip).tag = "notw0"
    p("s_lshl_b32", sT0, sGI, 2); p("v_mov_b32", T(1), sT0); p("v_mov_b32", T(2), 1)
    p("s_mov_b64", S(42, 2), EXEC); p("s_mov_b64", EXEC, 1)
    p("global_atomic_add", T(1), T(2), sDBG2, mods="sc1")
    p("s_mov_b32", sLOOP, 0)
    p.label(loop)
    p("global_load_dword", T(3), T(1), sDBG2, mods="sc1"); p.wait(vm=0)
    p("v_readfirstlane_b32", sT0, T(3))
    p("s_add_u32", sLOOP, sLOOP, 1); p("s_cmp_gt_u32", sLOOP, 400000); p("s_cbranch_scc1", out)
    p("s_cmp_lt_u32", sT0, 16)
    if opt.get("sleep", 0):
        p("s_cbranch_scc0", out); p("s_sleep", opt["sleep"]); p("s_branch", loop).tag = "pollback"
    else:
        p("s_cbranch_scc1", loop)
    p.label(out)
    p("s_mov_b64", EXEC, S(42, 2))
    p.label(skip)
    p("s_barrier")
    sWp, sBlk, sOa = S(54), S(55), S(56)
    src = lambda n, j: V(n * 64 + 4 * j, 4)
    D = lambda n, e: V(128 + n * 8 + 4 * e, 4)
    p("v_and_b32", T(1), 15, l); p("v_mul_u32_u24", T(1), 2304, T(1))
    p("v_lshrrev_b32", T(2), 4, l); p("v_lshlrev_b32", T(2), 3, T(2)); p("v_add_u32", T(1), T(1), T(2))
    fin = p.uid("red_fin"); one = p.uid("red_one")
    p("s_lshr_b32", S(44), sH0, 1); p("s_lshl_b32", sT0, sW, 4); p("s_add_u32", S(44), S(44), sT0)
    p("s_add_u32", S(45), S(44), 64)

    def loads(n, su):
        p("s_lshl_b32", sT0, su, 10); p("v_add_u32", T(3 + n), sT0, vL16)
        for j in range(16):
            p("s_mov_b32", sT1, j * PART_CU)
            p("buffer_load_dwordx4", src(n, j), T(3 + n), sPR, sT1, mods=f"offen {ppol}")

    def finish(n, su):
        for j in range(16):
            p(MF, D(n, 0), SEL1, src(n, j), 0 if j == 0 else D(n, 0)); p(MF, D(n, 1), SEL2, src(n, j), 0 if j == 0 else D(n, 1))
        p("s_mul_i32", sWp, su, 2850); p("s_lshr_b32", sWp, sWp, 16); p("s_mul_i32", sT0, sWp, 23); p("s_sub_u32", sBlk, su, sT0)
        for e in range(2):
            lab = p.uid("red_skip")
            p("s_lshl_b32", sT0, sBlk, 1); p("s_add_u32", sT0, sT0, e)
            if e: p("s_cmp_ge_u32", sT0, 45); p("s_cbranch_scc1", lab)
            p("s_mul_i32", sT1, sT0, 52); p("s_lshr_b32", sT1, sT1, 8)
            p("s_mul_i32", sT2, sT1, 5); p("s_sub_u32", sT2, sT0, sT2)
            p("s_mul_i32", sT0, sWp, 9); p("s_add_u32", sT0, sT0, sT1); p("s_lshl_b32", sT0, sT0, 5)
            p("s_lshl_b32", sT2, sT2, 4); p("s_mul_i32", sT1, sB, 80); p("s_add_u32", sT2, sT2, sT1); p("s_mul_i32", sT2, sT2, 2304)
            p("s_add_u32", sT0, sT0, sT2); p("s_mul_i32", sT1, sBR, 1152); p("s_add_u32", sOa, sT0, sT1)
            d = D(n, e); r = V(144 + n * 4 + 2 * e, 2)
            p("v_cvt_pk_bf16_f32", r[0], d[0], d[1]); p("v_cvt_pk_bf16_f32", r[1], d[2], d[3])
            p("buffer_store_dwordx2", r, T(1), sOUT, sOa, mods="offen")
            if e: p.label(lab)

    loads(0, S(44))
    p("s_cmp_ge_u32", S(45), 92); p("s_cbranch_scc1", one).tag = "oneunit"
    loads(1, S(45))
    p.wait(vm=16); finish(0, S(44))
    p.wait(vm=1); finish(1, S(45))
    p("s_branch", fin)
    p.label(one)
    p.wait(vm=0); finish(0, S(44))
    p.label(fin)


def attention_path(p, c, slow_sites, opt):
    L = c.kind
    l = vLane
    base = 40 if c.B else 0
    p("s_load_dwordx4", S(60, 4), S(0, 2), base)
    p("s_load_dwordx4", S(64, 4), S(0, 2), base + 16)
    p("s_load_dwordx2", sWS, S(0, 2), 96)
    p.wait(lgkm=0)
    p("s_mul_i32", sT0, sB, 92160); srd_from(p, sX, S(60), S(61), sT0, 92160)
    p("s_lshl_b32", sT0, sH0, 8); srd_from(p, sWQ, S(66), S(67), sT0, 0)
    p("s_sub_u32", sWQ[2], 4718592, sT0)
    if c.B:
        p("s_lshl_b32", sT0, sB, 5); p("s_add_u32", sT0, sT0, sH0); p("s_lshl_b32", sT0, sT0, 18); ksz = 524288
    else:
        p("s_lshl_b32", sT0, sB, 4); p("s_lshr_b32", sT1, sH0, 1); p("s_add_u32", sT0, sT0, sT1); p("s_lshl_b32", sT0, sT0, 18); ksz = 262144
    srd_from(p, sK, S(62), S(63), sT0, ksz)
    srd_from(p, sVv, S(64), S(65), sT0, ksz)
    p("s_lshl_b32", sT0, sB, 5); p("s_add_u32", sT0, sT0, sH0); p("s_mul_i32", sT0, sT0, 20480)
    if c.B: p("s_add_u32", sT0, sT0, O_BRANCH)
    srd_from(p, sO, sWS[0], sWS[1], sT0, 40960)
    p("s_lshr_b32", sHD, sW, 1); p("s_and_b32", sKG, sW, 1)
    p("s_mov_b32", sC, hex(f2u(CSCALE))); p("s_mov_b32", s24, "0x41c00000")
    p("s_add_u32", sROT, sS, sJ)
    if c.B:
        p("s_lshl_b32", sBASE, sW, 13); p("s_lshl_b32", sRING, sW, 15)
    else:
        p("s_lshl_b32", sBASE, sKG, 13); p("s_lshl_b32", sT0, sHD, 12); p("s_add_u32", sBASE, sBASE, sT0)
        p("s_lshl_b32", sRING, sKG, 16); p("s_add_u32", sRING, sRING, sT0)
    p("s_mov_b32", sN, 0)

    q_phase(p, c, opt)
    stamp(p, 1)
    opol = opt.get("opol", "")
    if STAMP["on"] and STAMP.get("q"):
        p("s_lshl_b32", sT0, sWG, 2); p("s_add_u32", sT0, sT0, sW); p("s_lshl_b32", sT0, sT0, 8); p("s_add_u32", sT0, sT0, 17 << 20)
        p("v_lshlrev_b32", V(251), 2, vLane); p("v_add_u32", V(251), sT0, V(251))
        p("global_store_dword", V(251), V(250), sWS)
    if c.B:
        calc_off(p, c); p.add(dma_tile(c, "K", 2, "K1")); p.add(dma_tile(c, "V", 3, "V1"))
        att_setup2(p, c)
        p.add(mkneed("K"))
    else:
        for n in range(2, EXP.get("la", 4)):
            calc_off(p, c); p.add(dma_tile(c, "K", 2 * n, f"K{n}")); p.add(dma_tile(c, "V", 2 * n + 1, f"V{n}"))
        att_setup2(p, c)
        p.add(mkneed("K")); p("s_barrier")
    fused = opt.get("fused", False)
    if fused: post_load_ptrs(p, c)
    p.add(k_reads(0, "K0"))
    p.wait(lgkm=0)
    if c.B:
        calc_off(p, c); p.add(dma_tile(c, "K", 0, "K2"))
    if fused: post_srds(p, c)

    def wo_start():
        post_dma_setup(p)
        for k in range(2):
            for g in wo_groups(k): p.add(g)

    def args(n):
        ks = (2 * n + 2) % c.nslots; vs = (2 * n + 1) % c.nslots
        if c.B: dv, dk = vs, ks
        else:
            la = EXP.get("la", 4)
            dv, dk = (2 * (n + la) + 1) % c.nslots, (2 * (n + la)) % c.nslots
        return (n * 5) & 1, ks, vs, dv, dk

    def zero_t4():
        for dt in range(8):
            for i in range(4): p("v_mov_b32", O(4, dt)[i], 0)
        p("v_mov_b32", vM1, 0)
        for i in range(4): p("v_accvgpr_write_b32", LA(4)[i], vM1)

    def copy_groups(gs):
        out = []
        for g in gs:
            ng = []
            for x in g:
                y = mk(x.op, *x.ops, mods=x.mods, tag=x.tag); y.tile = x.tile; ng.append(y)
            out.append(ng)
        return out

    if c.B:
        p("s_mov_b32", sHEAD, 0)
        stamp(p, 2)
        hl = p.uid("head")
        p.label(hl)
        zero_t4()
        p.add(qk_mfmas(0, 0))
        cy = emit_step(p, c, *args(0), True, False, slow_sites, 0, [])
        lab = p.uid("loop")
        p("s_mov_b32", sLOOP, 0)
        p.label(lab)
        cy1 = emit_step(p, c, *args(1), False, False, slow_sites, 1, cy)
        cy2 = emit_step(p, c, *args(2), False, False, slow_sites, 2, cy1)
        p("s_add_u32", sLOOP, sLOOP, 1); p("s_cmp_lt_u32", sLOOP, 3)
        p("s_cbranch_scc1", lab).tag = ("loop", 3)
        def pf_b():
            lab = p.uid("wopf")
            p("s_cmp_eq_u32", sHEAD, 1); p("s_cbranch_scc0", lab).tag = ("headsel", 0)
            for g in wo_l2_prefetch(p): p.add(g)
            p.label(lab)
        emit_step(p, c, *args(7), False, True, slow_sites, 7, copy_groups(cy2), pf_b if (fused and opt.get("wopf", True)) else None)
        emit_drain(p, c, (7 * 5) & 1)
        fin = p.uid("fin")
        if STAMP["on"]:
            p("s_cmp_eq_u32", sHEAD, 1)
            p("s_cbranch_scc0", fin + "a").tag = ("headsel", 0)
            stamp(p, 5)
            p("s_branch", fin + "b")
            p.label(fin + "a")
            stamp(p, 3)
            p.label(fin + "b")
        if not fused:
            epilogue(p, c, sHEAD, opol)
            p("s_cmp_eq_u32", sHEAD, 1)
            p("s_cbranch_scc1", fin).tag = ("headsel", 1)
            for s in range(4):
                for t in range(5):
                    for i in range(4): p("v_accvgpr_mov_b32", Q(s, t)[i], Q2(s, t)[i])
            p("s_mov_b32", sHEAD, 1)
            p("s_barrier")
            stamp(p, 4)
            p("s_branch", hl)
            p.label(fin)
        else:
            l1, l2, l3 = p.uid("h0a"), p.uid("h0b"), p.uid("h0c")
            p("s_cmp_eq_u32", sHEAD, 1); p("s_cbranch_scc1", l1).tag = ("headsel", 1)
            for s in range(4):
                for t in range(5):
                    for i in range(4): p("v_accvgpr_mov_b32", Q(s, t)[i], Q2(s, t)[i])
            p.label(l1)

            def bfb():
                p("s_cmp_eq_u32", sHEAD, 1); p("s_cbranch_scc0", l2).tag = ("headsel", 0)
                p.wait(vm=0)
                p.label(l2)

            def afb():
                p("s_cmp_eq_u32", sHEAD, 1); p("s_cbranch_scc0", l3).tag = ("headsel", 0)
                wo_start()
                p.label(l3)
            epilogue(p, c, sHEAD, opol, True, afb, bfb)
            p("s_cmp_eq_u32", sHEAD, 1)
            p("s_cbranch_scc1", fin).tag = ("headsel", 1)
            for t in range(5):
                for i in range(4): p("v_accvgpr_write_b32", A(80 + 4 * t + i), O(t, 0)[i])
            p("s_mov_b32", sHEAD, 1)
            p("s_barrier")
            stamp(p, 4)
            p("s_branch", hl)
            p.label(fin)
            p("s_mul_i32", sT0, sW, 5120); p("v_add_u32", vM1, sT0, vL16)
            for t in range(5):
                p("ds_write_b128", vM1, A(80 + 4 * t, 4), mods=f"offset:{t * 1024}")
                p("ds_write_b128", vM1, O(t, 0), mods=f"offset:{20480 + t * 1024}")
            p.wait(lgkm=0)
            p("s_branch", "att_post")
    else:
        zero_t4()
        p.add(qk_mfmas(0, 0))
        stamp(p, 2)
        emit_step(p, c, *args(0), True, False, slow_sites, 0, [])
        lab = p.uid("loop")
        p("s_mov_b32", sLOOP, 0)
        p.label(lab)
        for u in range(4):
            emit_step(p, c, *args(1 + u), False, False, slow_sites, 1 + u, [])
        p("s_add_u32", sLOOP, sLOOP, 1); p("s_cmp_lt_u32", sLOOP, 3)
        p("s_cbranch_scc1", lab).tag = ("loop", 3)
        emit_step(p, c, *args(13), False, False, slow_sites, 13, [])
        emit_step(p, c, *args(14), False, False, slow_sites, 14, [])
        def pf_a():
            for g in wo_l2_prefetch(p): p.add(g)
        emit_step(p, c, *args(15), False, True, slow_sites, 15, [], pf_a if (fused and opt.get("wopf", True)) else None)
        emit_drain(p, c, (15 * 5) & 1)
        stamp(p, 3); stamp(p, 4); stamp(p, 5)
        if not fused:
            epilogue(p, c, 0, opol)
        else:
            epilogue(p, c, 0, opol, True, wo_start, lambda: p.wait(vm=0))
            p("s_mul_i32", sT0, sHD, 20480); p("s_mul_i32", sT1, sKG, 10240); p("s_add_u32", sT0, sT0, sT1); p("v_add_u32", vM1, sT0, vL16)
            for f in range(2):
                for t in range(5):
                    p("ds_write_b128", vM1, O(t, 2 * f), mods=f"offset:{f * 5120 + t * 1024}")
            p.wait(lgkm=0)


def gen_att_kernel(name, opt=None):
    opt = opt or {}
    p = Prog()
    slowB, slowA = [], []
    p("s_cmp_ge_u32", sWG, 256); p("s_cbranch_scc1", "att_end")
    STAMP["on"] = bool(opt.get("stamp")); STAMP["q"] = opt.get("qstamp")
    EXP.clear(); EXP.update(opt.get("exp", {}))
    stamp(p, 0)
    if STAMP["on"] and not opt.get("fused"): p("s_memtime", S(86, 2))
    p("v_lshrrev_b32", V(1), 6, V(0)); p("v_and_b32", vLane, 63, V(0))
    p("v_readfirstlane_b32", sW, V(1))
    p("v_lshlrev_b32", vL16, 4, vLane)
    p("s_and_b32", sJ, sWG, 7); p("s_lshr_b32", sS, sWG, 3)
    if opt.get("map", 0) == 0:
        p("s_and_b32", sB, sS, 7)
        p("s_bfe_u32", sT0, sS, "0x10003"); p("s_lshl_b32", sT0, sT0, 1); p("s_lshl_b32", sH0, sJ, 2); p("s_add_u32", sH0, sH0, sT0)
    else:
        p("s_and_b32", sT0, sJ, 1); p("s_lshl_b32", sT0, sT0, 2); p("s_and_b32", sB, sS, 3); p("s_add_u32", sB, sB, sT0)
        p("s_lshr_b32", sT0, sJ, 1); p("s_lshl_b32", sT0, sT0, 2); p("s_bfe_u32", sT1, sS, "0x20002"); p("s_add_u32", sT0, sT0, sT1)
        p("s_lshl_b32", sH0, sT0, 1)
    p("s_cmp_ge_u32", sS, 16); p("s_cbranch_scc1", "att_A").tag = "isA"
    cB, cA = Cfg("B"), Cfg("A")
    only = opt.get("only")
    if only != "A": attention_path(p, cB, slowB, opt)
    p("s_branch", "att_fin")
    p.label("att_A")
    if only != "B": attention_path(p, cA, slowA, opt)
    if opt.get("fused"):
        p.label("att_post")
        p("s_barrier")
        stamp(p, 6)
        post_phase(p, opt)
    p.label("att_fin")
    if opt.get("stamp") and not opt.get("fused"):
        p.wait(vm=0)
        stamp(p, 6); p("s_memtime", S(88, 2)); p("s_load_dwordx2", sWS, S(0, 2), 96); p.wait(lgkm=0)
        p("s_sub_u32", S(84), S(88), S(86)); p("s_mov_b32", S(85), 0)
        p("s_lshl_b32", sT0, sWG, 2); p("s_add_u32", sT0, sT0, sW); p("s_lshl_b32", sT0, sT0, 6); p("s_add_u32", sT0, sT0, 16 << 20)
        p("v_mov_b32", V(4), sT0)
        for i in range(16): p("v_mov_b32", V(8 + i), S(70 + i))
        p("v_cmp_eq_u32", VCC, 0, vL16); p("s_and_saveexec_b64", S(62, 2), VCC); p("s_cbranch_execz", "att_end")
        for i in range(0, 16, 4):
            p("global_store_dwordx4", V(4), V(8 + i, 4), sWS, mods=f"offset:{i * 4}")
    if opt.get("stamp") and opt.get("fused"):
        p.wait(vm=0)
        p("s_memrealtime", S(90, 2)); p.wait(lgkm=0)
        p("s_lshl_b32", sT0, sWG, 2); p("s_add_u32", sT0, sT0, sW); p("s_lshl_b32", sT0, sT0, 7); p("s_add_u32", sT0, sT0, 64 << 20)
        p("v_mov_b32", V(4), sT0)
        for i in range(20): p("v_mov_b32", V(8 + i), S(70 + i))
        p("v_mov_b32", V(28), S(90)); p("v_mov_b32", V(29), S(91)); p("v_mov_b32", V(30), 0); p("v_mov_b32", V(31), 0)
        p("v_cmp_eq_u32", VCC, 0, vL16); p("s_and_saveexec_b64", S(62, 2), VCC); p("s_cbranch_execz", "att_end")
        for i in range(0, 24, 4):
            p("global_store_dwordx4", V(4), V(8 + i, 4), sWS, mods=f"offset:{i * 4}")
    p.label("att_end")
    p("s_endpgm")
    emit_slow(p, slowB + slowA)
    for lab, back, fn in RARE:
        p.label(lab); p.nop(4); fn(); p("s_branch", back)
    RARE.clear()
    def mkdec(isA, w):
        def decide(ins, visit):
            tg = ins.tag
            if tg == "isA": return isA
            if tg == "role0": return w != 0
            if tg == "notw0": return w != 0
            if ins.op == "s_cbranch_scc0" and str(ins.target).startswith("poll_out"): return True
            if tg == "oneunit": return w >= 2
            if isinstance(tg, tuple) and tg[0] == "loop": return visit % tg[1] != 0
            if isinstance(tg, tuple) and tg[0] == "headsel":
                return (visit == 1) if tg[1] == 0 else (visit == 2)
            return False
        return decide
    roles = [(isA, w) for isA in (False, True) for w in range(4)]
    if only == "A": roles = [r for r in roles if r[0]]
    if only == "B": roles = [r for r in roles if not r[0]]
    if not EXP.get("nodma"):
        resolve_needs(p.items, [mkdec(*r) for r in roles], lambda di: 4 if roles[di][0] else 8)
    pad_hazards(p)
    for isA, w in roles:
        n, errs = check_trace(p.items, mkdec(isA, w), name=f"{'A' if isA else 'B'}w{w}")
        for e in errs[:6]: print("TRACE:", e)
    return p, LDS_TOTAL


if __name__ == "__main__":
    import build, sys
    name = "att_kernel"
    import json
    opt = dict(stamp=True)
    if len(sys.argv) > 1: opt.update(json.loads(sys.argv[1]))
    p, lds = gen_att_kernel(name, opt)
    txt = f"; @launch kernel={name} grid=(256,1,1) block=(256,1,1) lds={lds}\n" + '.amdgcn_target "amdgcn-amd-amdhsa--gfx950"\n'
    txt += kernel_text(name, p) + KD.format(name=name, vgpr=512, sgpr=102, acc=256)
    open("att.s", "w").write(txt)
    print(build.build("att.s"), len(txt), "instructions:", sum(1 for i in p.items if isinstance(i, Ins)))
```

```python
import sys, json
from asmlib import *
import gen_att, build
from gen_s1 import compact
KN = "concat_heads__gqa_block_cached__mha_block_cached__near_ridge_kernel"
HDR = """; concat_heads(GQA block, MHA block) in one persistent launch:
"""
def gen(opt):
    opt = dict(opt); opt["fused"] = True; opt["stamp"] = bool(opt.get("dbgstamp"))
    p, lds = gen_att.gen_att_kernel(KN, opt)
    txt = HDR + f"; @launch grid=(256,1,1) block=(256,1,1) lds={lds}\n" + '.amdgcn_target "amdgcn-amd-amdhsa--gfx950"\n'
    body = kernel_text(KN, p) + KD.format(name=KN, vgpr=512, sgpr=102, acc=256)
    return txt + compact(body)
if __name__ == "__main__":
    out = sys.argv[1]
    opt = json.loads(sys.argv[2]) if len(sys.argv) > 2 else {}
    t = gen(opt)
    open(out, "w").write(t)
    print(build.build(out), len(t))
```

```python
import math
from asmlib import *

O_BRANCH = 8 * 32 * 20 * 1024
LDS_TOTAL = 163840
SCR = 131072
CSCALE = math.log2(math.e) / math.sqrt(128.0)


def f2u(x):
    import struct
    return struct.unpack("<I", struct.pack("<f", x))[0]


sWG, sW = S(2), S(3)
sX, sWQ, sK, sVv, sO = S(8, 4), S(12, 4), S(16, 4), S(20, 4), S(24, 4)
sC = S(28)
s24 = S(29)
sRET = S(30, 2)
sROT, sBASE, sN, sOFF, sRING, sLOOP, sHEAD = S(32), S(33), S(34), S(35), S(37), S(38), S(39)
sT0, sT1, sT2, sT3 = S(40), S(41), S(42), S(43)
sK64, sKW = S(44), S(45)
sJ, sS, sB, sH0 = S(46), S(47), S(48), S(49)
sWS = S(50, 2)
sHD, sKG = S(52), S(53)
sTIME = S(54, 2)
sDBG = S(56, 2)


def O(t, dt): return V((t * 8 + dt) * 4, 4)
def Sb(par): return V(160 + 8 * par, 8)
def Pb(par): return V(176 + 4 * par, 4)
def MC(t): return V(184 + t)
vM1, vM2 = V(189), V(190)
def aK(s): return V(191 + s)
def aV(dt): return V(195 + dt)
def vKd(i): return V(203 + i)
def vVd(i): return V(207 + i)
vL16 = V(209)
vLane = V(210)
vT = V(211)
FREE = 212


def Q(s, t): return A((s * 5 + t) * 4, 4)
def Q2(s, t): return A(80 + (s * 5 + t) * 4, 4)
def KF(kt, s): return A(160 + (kt * 4 + s) * 4, 4)
def VF(dt): return A(192 + dt * 4, 4)
def LA(t): return A(224 + t * 4, 4)
ONES = A(244, 4)
SEL1 = A(248, 4)
SEL2 = A(252, 4)


class Cfg:
    def __init__(self, kind):
        self.kind = kind
        self.B = kind == "B"
        self.nslots = 4 if self.B else 8
        self.ipt = 8 if self.B else 4
        self.steps = 8 if self.B else 16
        self.W = [16384, 49152, 81920, 114688] if self.B else [32768, 49152, 98304, 114688]
        self.X = [SCR + 5120 * i for i in range(4)]


def srd_from(p, dst, lo, hi, off_s, size):
    if off_s is not None:
        p("s_add_u32", dst[0], lo, off_s); p("s_addc_u32", dst[1], hi, 0)
        p("s_and_b32", dst[1], dst[1], "0xffff")
    else:
        p("s_mov_b32", dst[0], lo); p("s_and_b32", dst[1], hi, "0xffff")
    p("s_mov_b32", dst[2], size); p("s_mov_b32", dst[3], "0x20000")


STAMP = {"on": False}
def stamp(p, i):
    if STAMP["on"]:
        p("s_memrealtime", S(70 + 2 * i, 2))


def calc_off(p, c):
    if c.B:
        p("s_add_u32", sT0, sN, sROT); p("s_and_b32", sT0, sT0, 7); p("s_lshl_b32", sT0, sT0, 15)
        p("s_lshr_b32", sT1, sN, 3); p("s_lshl_b32", sT1, sT1, 18)
    else:
        p("s_add_u32", sT0, sN, sROT); p("s_and_b32", sT0, sT0, 15); p("s_lshl_b32", sT0, sT0, 14)
        p("s_lshr_b32", sT1, sN, 4); p("s_lshl_b32", sT1, sT1, 18)
    p("s_add_u32", sT0, sT0, sT1); p("s_add_u32", sOFF, sT0, sBASE); p("s_add_u32", sN, sN, 1)


EXP = {}
def dma_tile(c, kind, slot, tag, pol="nt"):
    L = []
    if EXP.get("nodma"): return L
    srd = sK if kind == "K" else sVv
    for half in range(c.ipt // 4):
        L.append(mk("s_add_u32", M0, sRING, slot * 8192 + half * 4096))
        if half:
            L.append(mk("s_add_u32", sT2, sOFF, 4096)); so = sT2
        else:
            L.append(mk("s_nop", 0)); so = sOFF
        for i in range(4):
            vo = vKd(i) if kind == "K" else vVd(i & 1)
            d = mk("buffer_load_dwordx4", vo, srd, so, mods=f"offen offset:{i * 1024} {pol} lds", tag=tag)
            d.tile = kind
            L.append(d)
    return L


def dma_groups(c, kind, slot, tag):
    out, g = [], []
    for x in dma_tile(c, kind, slot, tag):
        g.append(x)
        if x.kind == "vmem": out.append(g); g = []
    return out


def k_reads(slot, tag):
    L = []
    if EXP.get("noreads"): return [mk("s_nop", 0) for _ in range(8)]
    for s in range(4):
        for kt in range(2):
            i = mk("ds_read_b128", KF(kt, s), aK(s), mods=f"offset:{slot * 8192 + kt * 4096}")
            i.ldsuse = {tag}
            L.append(i)
    return L


def v_reads(slot, dt, tag):
    L = []
    if EXP.get("noreads"): return L
    for h in range(2):
        i = mk("ds_read_b64_tr_b16", VF(dt).sub(2 * h, 2), aV(dt), mods=f"offset:{slot * 8192 + h * 4096}")
        i.ldsuse = {tag}
        L.append(i)
    return L


MF = "v_mfma_f32_16x16x32_bf16"


def qk_mfmas(t, par):
    L = []
    for s in range(4):
        for kt in range(2):
            d = Sb(par).sub(4 * kt, 4)
            L.append(mk(MF, d, KF(kt, s), Q(s, t), 0 if s == 0 else d))
    return L


def pv_mfmas(t, par, first=False):
    L = []
    for dt in range(8):
        L.append(mk(MF, O(t, dt), VF(dt), Pb(par), 0 if first else O(t, dt)))
    L.append(mk(MF, LA(t), ONES, Pb(par), 0 if first else LA(t)))
    return L


def sm_valu(p, t, par, first, slow_sites):
    x = Sb(par)
    L = []
    if first:
        L.append(mk("v_max3_f32", vM1, x[0], x[1], x[2])); L.append(mk("v_max3_f32", vM2, x[3], x[4], x[5]))
        L.append(mk("v_max3_f32", vM1, vM1, x[6], x[7])); L.append(mk("v_max_f32", vM1, vM1, vM2))
        L.append(mk("v_mov_b32", vM2, vM1)); L.append(mk("v_permlane32_swap_b32", vM1, vM2)); L.append(mk("v_max_f32", vM1, vM1, vM2))
        L.append(mk("v_mov_b32", vM2, vM1)); L.append(mk("v_permlane16_swap_b32", vM1, vM2)); L.append(mk("v_max_f32", vM1, vM1, vM2))
        L.append(mk("v_mul_f32", vM1, sC, vM1))
        L.append(mk("v_add_f32", vM2, "0x41800000", vM1))
        L.append(mk("v_cmp_gt_f32", VCC, Abs(vM2), s24))
        L.append(mk("v_cndmask_b32", MC(t), 0, vM1))
        for i in range(8): L.append(mk("v_fma_f32", x[i], x[i], sC, Neg(MC(t))))
    else:
        for i in range(8): L.append(mk("v_fma_f32", x[i], x[i], sC, Neg(MC(t))))
        L.append(mk("v_max3_f32", vM1, x[0], x[1], x[2])); L.append(mk("v_max3_f32", vM2, x[3], x[4], x[5]))
        L.append(mk("v_max3_f32", vM1, vM1, x[6], x[7])); L.append(mk("v_max_f32", vM1, vM1, vM2))
        L.append(mk("v_cmp_lt_f32", VCC, "0x41000000", vM1))
        stub = p.uid("stub"); back = p.uid("back")
        br = mk("s_cbranch_vccnz", stub)
        L.append(br); L.append(Label(back))
        slow_sites.append((stub, back, t, par))
    if not EXP.get("noexp"):
        for i in range(8): L.append(mk("v_exp_f32", x[i], x[i]))
    for i in range(4): L.append(mk("v_cvt_pk_bf16_f32", Pb(par)[i], x[2 * i], x[2 * i + 1]))
    return L


def icost(x):
    if isinstance(x, Label): return 0
    if x.kind == "trans": return 8
    if x.kind == "mfma": return 8
    return 4


def merge(mf, va, dm=()):
    n = len(mf)
    place = {}
    for lo, hi, g in dm:
        place.setdefault((lo, hi), []).append(g)
    at = [[] for _ in range(n)]
    for (lo, hi), gs in place.items():
        for k, g in enumerate(gs):
            at[min(n - 1, lo + ((2 * k + 1) * (hi - lo + 1)) // (2 * len(gs)))].append(g)
    side = [sum(icost(x) for x in mf[i] if x.kind != "mfma") + sum(icost(x) for g in at[i] for x in g) for i in range(n)]
    total = sum(side) + sum(icost(x) for x in va)
    out, vi, acc = [], 0, 0
    for i in range(n):
        out.extend(mf[i])
        for g in at[i]: out.extend(g)
        acc += side[i]
        target = total * (i + 1) / n
        while vi < len(va) and (acc + icost(va[vi]) / 2 <= target or isinstance(va[vi], Label)):
            out.append(va[vi]); acc += icost(va[vi]); vi += 1
    out.extend(va[vi:])
    return out


def emit_step(p, c, n_par, slotK_next, slotV, dmaV_slot, dmaK_slot, first, last, slow_sites, tagn, carry, extra4=None):
    left = []
    if c.B:
        vg = dma_groups(c, "V", dmaV_slot, f"V{tagn + 2}")
        tmp = Prog(); calc_off(tmp, c)
        kg = dma_groups(c, "K", dmaK_slot, f"K{tagn + 3}")
        if kg: kg[0] = tmp.items + kg[0]
    else:
        la = EXP.get("la", 4)
        tmp = Prog(); calc_off(tmp, c)
        kg = dma_groups(c, "K", dmaK_slot, f"K{tagn + la}")
        if kg: kg[0] = tmp.items + kg[0]
        vg = dma_groups(c, "V", dmaV_slot, f"V{tagn + la}")
    for t in range(5):
        par = (n_par + t) & 1
        mf, dm = [], []
        va = sm_valu(p, t, par, first, slow_sites)
        if t < 4:
            qk = qk_mfmas(t + 1, par ^ 1)
            if t == 3:
                pre = [mkneed("K")]
                if not c.B: pre.append(mk("s_barrier"))
                kr = k_reads(slotK_next, f"K{tagn + 1}")
                mf.append(pre + [qk[0], kr[0]])
                for i in range(1, 8): mf.append([qk[i], kr[i]])
            else:
                for m in qk: mf.append([m])
        elif not last:
            qk = qk_mfmas(0, par ^ 1)
            mf.append([mkwait(lgkm=0), qk[0]])
            for m in qk[1:]: mf.append([m])
        else:
            mf.append([mkwait(lgkm=0)])
        nq = len(mf)
        if t == 0:
            pre = [mkneed("V")]
            if not c.B: pre.append(mk("s_barrier"))
            if first:
                mf.append(pre)
                for dt in range(8): mf.append(v_reads(slotV, dt, f"V{tagn}") or [mk("s_nop", 0)])
            else:
                pv = pv_mfmas(4, par ^ 1)
                mf.append(pre + [pv[0]] + v_reads(slotV, 0, f"V{tagn}"))
                for dt in range(1, 8): mf.append([pv[dt]] + v_reads(slotV, dt, f"V{tagn}"))
                mf.append([pv[8]])
        else:
            pv = pv_mfmas(t - 1, par ^ 1, first=first)
            if t == 1:
                mf.append([mkwait(lgkm=0), pv[0]])
                for m in pv[1:]: mf.append([m])
            else:
                for m in pv: mf.append([m])
        n = len(mf)
        if c.B:
            mode = EXP.get("dmode", 1)
            if mode == 0:
                if t == 0: dm = [(0, nq - 1, g) for g in carry]
                elif t == 1: dm = [(nq, n - 1, g) for g in vg[0:2]]
                elif t == 2: dm = [(0, n - 1, g) for g in vg[2:6]]
                elif t == 3: dm = [(nq, n - 1, g) for g in vg[6:8]]
                else:
                    if last: dm = [(0, n - 1, g) for g in kg]
                    else: dm = [(0, n - 1, g) for g in kg[0:4]]; left = kg[4:8]
            elif mode == 1:
                if t == 1: dm = [(nq, n - 1, g) for g in vg[0:4]]
                elif t == 2: dm = [(0, nq - 1, g) for g in vg[4:8]]
                elif t == 4: dm = [(0, n - 1, g) for g in kg]
            else:
                if t == 1: dm = [(nq, n - 1, g) for g in vg]
                elif t == 4: dm = [(0, min(n - 1, 8), g) for g in kg]
        else:
            mode = EXP.get("dmode", 1)
            if mode == 0:
                if t == 0: dm = [(nq, n - 1, g) for g in kg[0:2]]
                elif t == 1: dm = [(0, n - 1, g) for g in kg[2:4]]
                elif t == 3: dm = [(0, n - 1, g) for g in vg[0:2]]
                elif t == 4: dm = [(0, n - 1, g) for g in vg[2:4]]
            else:
                ks_, vs_ = EXP.get("aks", 0), EXP.get("avs", 3)
                if t == ks_: dm = [((nq if t == 0 else 0), n - 1, g) for g in kg]
                if t == vs_: dm = [(0, (nq - 1 if t == 3 else n - 1), g) for g in vg]
        if t == 0 and extra4 is not None: extra4()
        p.add(merge(mf, va, dm))
    return left


def emit_drain(p, c, n_par, first_is_only=False):
    par = (n_par + 4) & 1
    p.add(pv_mfmas(4, par))


def emit_slow(p, slow_sites):
    need = set()
    for stub, back, t, par in slow_sites:
        p.label(stub)
        p("s_call_b64", sRET, f"slow_{t}_{par}")
        p("s_branch", back)
        need.add((t, par))
    for t, par in sorted(need):
        x = Sb(par)
        p.label(f"slow_{t}_{par}")
        p.nop(16)
        p("v_mov_b32", vM2, vM1); p.nop(2); p("v_permlane32_swap_b32", vM1, vM2); p.nop(2); p("v_max_f32", vM1, vM1, vM2)
        p("v_mov_b32", vM2, vM1); p.nop(2); p("v_permlane16_swap_b32", vM1, vM2); p.nop(2); p("v_max_f32", vM1, vM1, vM2)
        p("v_max_f32", vM1, 0, vM1)
        p("v_add_f32", MC(t), MC(t), vM1)
        for i in range(8): p("v_sub_f32", x[i], x[i], vM1)
        p("v_sub_f32", vM2, 0, vM1); p("v_exp_f32", vM2, vM2); p.nop(2)
        for dt in range(8):
            for i in range(4): p("v_mul_f32", O(t, dt)[i], O(t, dt)[i], vM2)
        for i in range(4):
            p("v_accvgpr_read_b32", vM1, LA(t)[i]); p.nop(1); p("v_mul_f32", vM1, vM1, vM2); p.nop(1)
            p("v_accvgpr_write_b32", LA(t)[i], vM1)
        p.nop(8)
        p("s_setpc_b64", sRET)


def accQ(sl, half, t): return V(((sl * 2 + half) * 5 + t) * 4, 4)
def AF(buf, sl, half): return V(80 + buf * 16 + (sl * 2 + half) * 4, 4)
def BF(buf, t): return V(112 + buf * 20 + t * 4, 4)
def vWq(i): return V(152 + i)
vXd = V(156)
def aW(hi, sl): return V(157 + hi * 2 + sl)
vXr = V(163)
vQa, vQb, vQc = V(164), V(165), V(166)


def q_setup(p, c):
    l = vLane
    p("v_lshrrev_b32", V(170), 5, l); p("v_and_b32", V(171), 31, l)
    for i in range(4):
        p("v_lshlrev_b32", V(172), 2, V(170))
        if i & 1: p("v_add_u32", V(172), 8, V(172))
        p("v_xor_b32", V(172), V(172), V(171)); p("v_lshlrev_b32", V(172), 4, V(172))
        p("v_lshlrev_b32", V(173), 13, V(170)); p("v_add_u32", V(172), V(172), V(173))
        p("v_add_u32", vWq(i), i * 15360, V(172))
    p("v_lshrrev_b32", V(170), 2, l); p("v_lshrrev_b32", V(171), 4, l); p("v_sub_u32", V(171), 0, V(171))
    p("v_xor_b32", V(171), V(171), l); p("v_and_b32", V(171), 3, V(171)); p("v_lshlrev_b32", V(171), 4, V(171))
    p("v_mul_u32_u24", V(170), 1152, V(170)); p("v_add_u32", vXd, V(170), V(171))


def q_setup2(p, c):
    X = c.X
    l = vLane
    p("v_lshrrev_b32", V(170), 4, l)
    p("v_bfe_u32", V(171), l, 2, 2)
    p("v_and_b32", V(172), 3, l)
    p("v_lshlrev_b32", V(173), 3, V(170)); p("v_add_u32", V(173), V(173), V(171))
    p("v_lshlrev_b32", V(173), 9, V(173))
    for sl in range(2):
        p("s_lshl_b32", sT0, sW, 3); p("s_add_u32", sT0, sT0, 4 * sl)
        p("v_add_u32", V(175), sT0, V(172))
        p("v_lshlrev_b32", V(176), 2, V(171)); p("v_xor_b32", V(175), V(175), V(176))
        p("v_lshlrev_b32", V(175), 4, V(175)); p("v_add_u32", aW(0, sl), V(175), V(173))
        p("v_add_u32", aW(1, sl), 65536, aW(0, sl))
    p("v_and_b32", V(171), 15, l); p("v_lshrrev_b32", V(172), 2, V(171)); p("v_sub_u32", V(172), 0, V(172))
    p("v_xor_b32", V(172), V(172), V(170)); p("v_and_b32", V(172), 3, V(172)); p("v_lshlrev_b32", V(172), 4, V(172))
    p("v_lshlrev_b32", V(171), 6, V(171)); p("v_add_u32", V(171), V(171), V(172)); p("v_add_u32", vXr, X[0], V(171))
    for r in range(80): p("v_mov_b32", V(r), 0)


def own_prefetch(p, c, tiles):
    p("s_mov_b32", sN, 0)
    for kind, n in tiles:
        if kind == "K": calc_off(p, c)
        p.add(dma_tile(c, kind, (2 * n + (kind == "V")) % c.nslots, f"{kind}{n}"))


def l2_prefetch(p, c, qpol):
    l = vLane
    sP, sQ = S(92, 4), S(96, 4)
    p("v_lshlrev_b32", V(169), 7, l)

    def part(xoff, woff, share, nshare):
        p("s_load_dwordx2", S(60, 2), S(0, 2), xoff); p("s_load_dwordx2", S(62, 2), S(0, 2), woff)
        p.wait(lgkm=0)
        srd_from(p, sP, S(60), S(61), None, 737280)
        p("s_lshl_b32", sT0, sJ, 10); srd_from(p, sQ, S(62), S(63), sT0, 0); p("s_sub_u32", sQ[2], 4718592, sT0)
        rows = 32 // nshare
        p("s_mul_i32", sT0, share, rows); p("s_lshl_b32", sT1, sW, 5); p("s_add_u32", sT0, sT0, sT1); p("s_lshl_b32", sT0, sT0, 13)
        for k in range(5):
            for h in range(rows):
                if h: p("s_add_u32", sT1, sT0, h * 8192); so = sT1
                else: so = sT0
                d = p("buffer_load_dwordx4", V(232, 4), vL16, sQ, so, mods=f"offen {qpol}"); d.defs = []
            p("s_add_u32", sT0, sT0, 4 * 262144)
        per = 737280 // (nshare * 4)
        p("s_lshl_b32", sT0, share, 2); p("s_add_u32", sT0, sT0, sW); p("s_mul_i32", sT0, sT0, per)
        for i in range((per + 8191) // 8192):
            d = p("buffer_load_dword", V(229), V(169), sP, sT0, mods=f"offen {qpol}"); d.defs = []
            p("s_add_u32", sT0, sT0, 8192)
    part(40, 64, sS, 32)
    if not c.B:
        p("s_sub_u32", sT3, sS, 16)
        part(0, 24, sT3, 16)


def q_phase(p, c, opt):
    W, X = c.W, c.X
    qpol = opt.get("qpol", "")
    NST = 4
    sGW, sXW, sWL = S(57), S(58), S(59)

    def stage_dma(role, k):
        st, tag = k % NST, f"Q{k}"
        L = []
        g = [mk("s_add_u32", M0, sWL, W[st]), mk("s_add_u32", sT0, sKW, sGW)]
        for i in range(4):
            g.append(mk("buffer_load_dwordx4", vWq(i), sWQ, sT0, mods=f"offen offset:{i * 1024} {qpol} lds", tag=tag))
            L.append(g); g = []
        g = [mk("s_lshr_b32", sT1, sWL, 2), mk("s_add_u32", M0, sT1, X[st]), mk("s_add_u32", sT0, sK64, sXW),
             mk("buffer_load_dwordx4", vXd, sX, sT0, mods=f"offen {qpol} lds", tag=tag)]
        L.append(g)
        if role == 0:
            L.append([mk("s_mov_b32", M0, X[st] + 4096), mk("s_add_u32", sT0, sK64, 4 * 18432),
                      mk("buffer_load_dwordx4", vXd, sX, sT0, mods=f"offen {qpol} lds", tag=tag)])
        L[-1] += [mk("s_add_u32", sK64, sK64, 64), mk("s_add_u32", sKW, sKW, 262144)]
        return L

    def reads(k):
        st, buf = k % NST, k & 1
        hi, lo = W[st] // 65536, W[st] % 65536
        L = []
        for sl in range(2):
            for half in range(2):
                for kk in range(2):
                    i = mk("ds_read_b64_tr_b16", AF(buf, sl, half).sub(2 * kk, 2), aW(hi, sl), mods=f"offset:{lo + kk * 2048 + half * 8}")
                    i.ldsuse = {f"Q{k}"}; L.append([i])
        for t in range(5):
            i = mk("ds_read_b128", BF(buf, t), vXr, mods=f"offset:{st * 5120 + t * 1024}")
            i.ldsuse = {f"Q{k}"}; L.append([i])
        return L

    def mfmas(k):
        buf = k & 1
        return [mk(MF, accQ(sl, half, t), AF(buf, sl, half), BF(buf, t), accQ(sl, half, t))
                for t in range(5) for sl in range(2) for half in range(2)]

    def kstep(role, k, vm, dma, rd=True, mf=True):
        p.wait(vm=vm)
        if STAMP["on"] and STAMP.get("q"):
            p("s_memrealtime", S(90, 2)); p.wait(lgkm=0); p("v_writelane_b32", V(250), S(90), k)
        p("s_barrier")
        fill = dma + (reads(k) if rd else [])
        if mf:
            m = mfmas(k - 1)
            n, nf, fi = opt.get("qspread", 14), len(fill), 0
            for i, x in enumerate(m):
                want = min(nf, ((i + 1) * nf + n - 1) // n)
                while fi < want:
                    p.add(fill[fi]); fi += 1
                p.add(x)
        else:
            for g in fill: p.add(g)
        p.wait(lgkm=0)

    def tile_groups(kind, slot, tag):
        return dma_groups(c, kind, slot, tag)

    done = p.uid("qdone"); r1 = p.uid("qr1")
    q_setup(p, c)
    p("s_mov_b32", sK64, 0); p("s_mov_b32", sKW, 0)
    p("s_lshl_b32", sGW, sW, 16); p("s_mul_i32", sXW, sW, 18432); p("s_lshl_b32", sWL, sW, 12)
    if opt.get("l2pf", True): l2_prefetch(p, c, qpol)
    att_setup(p, c)
    if not c.B: own_prefetch(p, c, [("K", 0), ("V", 0), ("K", 1), ("V", 1)][:2 * min(2, EXP.get("la", 4))])
    p("s_cmp_eq_u32", sW, 0); p("s_cbranch_scc0", r1).tag = "role0"
    for role in range(2):
        n = 6 if role == 0 else 5
        if role == 1: p.label(r1)
        for k in range(3):
            for g in stage_dma(role, k): p.add(g)
        q_setup2(p, c)
        kstep(role, 0, 2 * n, stage_dma(role, 3), mf=False)
        if STAMP["on"] and STAMP.get("q"):
            for k in range(1, 13): kstep(role, k, 2 * n, stage_dma(role, k + 3))
        else:
            lab = p.uid("qloop")
            p("s_mov_b32", sLOOP, 0)
            p.label(lab)
            for k in range(1, 5): kstep(role, k, 2 * n, stage_dma(role, k + 3))
            p("s_add_u32", sLOOP, sLOOP, 1); p("s_cmp_lt_u32", sLOOP, 3)
            p("s_cbranch_scc1", lab).tag = ("loop", 3)
        kstep(role, 13, 2 * n, stage_dma(role, 16))
        kstep(role, 14, 2 * n, stage_dma(role, 17))
        if c.B:
            p("s_mov_b32", sN, 0); calc_off(p, c)
            kg, vg = tile_groups("K", 0, "K0"), tile_groups("V", 1, "V0")
            kstep(role, 15, 2 * n, kg)
            kstep(role, 16, n + 8, vg)
            kstep(role, 17, 16, [])
        else:
            kstep(role, 15, 2 * n, [])
            kstep(role, 16, n, [])
            kstep(role, 17, 0, [])
        p.add(mfmas(17))
        if role == 0: p("s_branch", done)
    p.label(done)
    p("s_barrier")
    pk = V(80, 40)
    for sl in range(2):
        for t in range(5):
            d = pk.sub((sl * 5 + t) * 4, 4)
            for half in range(2):
                a = accQ(sl, half, t)
                p("v_cvt_pk_bf16_f32", d[2 * half], a[0], a[1]); p("v_cvt_pk_bf16_f32", d[2 * half + 1], a[2], a[3])
    if c.B:
        p("s_mul_i32", sT0, sW, 32768); p("s_add_u32", sT0, sT0, 24576)
    else:
        p("s_lshr_b32", sT0, sW, 1); p("s_lshl_b32", sT0, sT0, 16); p("s_and_b32", sT1, sW, 1); p("s_lshl_b32", sT1, sT1, 13)
        p("s_add_u32", sT0, sT0, sT1); p("s_add_u32", sT0, sT0, 49152)
    p("v_add_u32", vQa, sT0, vL16)
    p("s_lshl_b32", sT1, sW, 11); p("s_add_u32", sT1, sT1, SCR); p("v_add_u32", vQb, sT1, vL16)
    for i in range(10):
        if i < 8: p("ds_write_b128", vQa, pk.sub(4 * i, 4), mods=f"offset:{i * 1024}")
        else: p("ds_write_b128", vQb, pk.sub(4 * i, 4), mods=f"offset:{(i - 8) * 1024}")
    p.wait(lgkm=0); p("s_barrier")

    def rd(dst, wsrc, i, baseZ, offZ, baseY, offY):
        if i < 8: p("ds_read_b128", dst, baseZ, mods=f"offset:{offZ + i * 1024}")
        else: p("ds_read_b128", dst, baseY, mods=f"offset:{offY + (i - 8) * 1024}")
    if c.B:
        p("v_add_u32", vQa, 65536, vL16); p("v_add_u32", vQb, SCR, vL16)
        for wsrc in range(4):
            base = vL16 if wsrc < 2 else vQa
            offZ = (wsrc & 1) * 32768 + 24576
            for i in range(10):
                s, t = 2 * (wsrc & 1) + i // 5, i % 5
                rd(Q(s, t) if wsrc < 2 else Q2(s, t), wsrc, i, base, offZ, vQb, wsrc * 2048)
    else:
        p("s_lshl_b32", sT0, sHD, 16); p("v_add_u32", vQa, sT0, vL16)
        p("s_lshl_b32", sT0, sHD, 12); p("s_add_u32", sT0, sT0, SCR); p("v_add_u32", vQb, sT0, vL16)
        for e in range(2):
            for i in range(10):
                s, t = 2 * e + i // 5, i % 5
                rd(Q(s, t), e, i, vQa, 49152 + e * 8192, vQb, e * 2048)
    p.wait(lgkm=0)
    p("s_barrier")


def att_setup(p, c):
    l = vLane
    F = FREE
    p("v_lshrrev_b32", V(F), 4, l); p("v_and_b32", V(F + 1), 15, l)
    p("v_xor_b32", V(F + 2), V(F), V(F + 1)); p("v_lshlrev_b32", V(F + 3), 8, V(F))
    for i in range(4):
        p("v_xor_b32", V(F + 4), 4 * i, V(F + 2)); p("v_lshlrev_b32", V(F + 4), 4, V(F + 4)); p("v_add_u32", vKd(i), V(F + 3), V(F + 4))
    for i in range(2):
        p("v_lshlrev_b32", V(F + 4), 1, V(F)); p("v_add_u32", V(F + 4), 8 * i, V(F + 4)); p("v_xor_b32", V(F + 4), V(F + 4), V(F + 1))
        p("v_lshlrev_b32", V(F + 4), 4, V(F + 4)); p("v_add_u32", vVd(i), V(F + 3), V(F + 4))


def att_setup2(p, c):
    l = vLane
    F = FREE
    p("v_lshrrev_b32", V(F), 4, l); p("v_and_b32", V(F + 1), 15, l)
    if c.B: p("s_lshl_b32", sT3, sW, 15)
    else: p("s_lshl_b32", sT3, sKG, 16)
    p("v_lshlrev_b32", V(F + 3), 8, V(F + 1)); p("v_add_u32", V(F + 3), sT3, V(F + 3))
    for s in range(4):
        p("v_add_u32", V(F + 4), 4 * s, V(F)); p("v_xor_b32", V(F + 4), V(F + 4), V(F + 1))
        p("v_lshlrev_b32", V(F + 4), 4, V(F + 4)); p("v_add_u32", aK(s), V(F + 3), V(F + 4))
    p("v_lshrrev_b32", V(F + 2), 2, l); p("v_lshlrev_b32", V(F + 3), 8, V(F + 2)); p("v_add_u32", V(F + 3), sT3, V(F + 3))
    p("v_and_b32", V(F + 4), 3, l); p("v_lshlrev_b32", V(F + 4), 3, V(F + 4)); p("v_add_u32", V(F + 3), V(F + 3), V(F + 4))
    p("v_and_b32", V(F + 2), 7, V(F + 2))
    if c.B: p("s_lshl_b32", sT1, sW, 1)
    else: p("s_lshl_b32", sT1, sKG, 2)
    for dt in range(8):
        p("s_add_u32", sT0, sT1, dt); p("s_and_b32", sT0, sT0, 7)
        p("v_xor_b32", V(F + 4), sT0, V(F + 2)); p("v_lshlrev_b32", V(F + 4), 5, V(F + 4)); p("v_add_u32", aV(dt), V(F + 3), V(F + 4))
    p("v_mov_b32", V(F + 4), "0x3f803f80")
    for i in range(4): p("v_accvgpr_write_b32", ONES[i], V(F + 4))
    p("v_lshrrev_b32", V(F + 2), 2, V(F + 1))
    p("v_and_b32", V(F + 3), 3, l)
    p("v_cmp_eq_u32", VCC, V(F + 2), V(F))
    p("v_cndmask_b32", V(F + 5), 7, V(F + 3))
    p("v_mov_b32", V(F + 6), 0); p("v_mov_b32", V(F + 7), 0)
    p("v_mov_b32", V(F + 8), "0x3f80"); p("v_mov_b32", V(F + 9), "0x3f800000")
    p("v_cmp_eq_u32", VCC, 0, V(F + 5)); p("v_cndmask_b32", V(F + 6), V(F + 6), V(F + 8))
    p("v_cmp_eq_u32", VCC, 1, V(F + 5)); p("v_cndmask_b32", V(F + 6), V(F + 6), V(F + 9))
    p("v_cmp_eq_u32", VCC, 2, V(F + 5)); p("v_cndmask_b32", V(F + 7), V(F + 7), V(F + 8))
    p("v_cmp_eq_u32", VCC, 3, V(F + 5)); p("v_cndmask_b32", V(F + 7), V(F + 7), V(F + 9))
    p("v_mov_b32", V(F + 8), 0)
    p("v_accvgpr_write_b32", SEL1[0], V(F + 6)); p("v_accvgpr_write_b32", SEL1[1], V(F + 7))
    p("v_accvgpr_write_b32", SEL1[2], V(F + 8)); p("v_accvgpr_write_b32", SEL1[3], V(F + 8))
    p("v_accvgpr_write_b32", SEL2[0], V(F + 8)); p("v_accvgpr_write_b32", SEL2[1], V(F + 8))
    p("v_accvgpr_write_b32", SEL2[2], V(F + 6)); p("v_accvgpr_write_b32", SEL2[3], V(F + 7))


def epilogue(p, c, sHead, opol="", fused=False, after_first_barrier=None, before_first_barrier=None):
    F = FREE
    B = c.B
    nsrc = 3 if B else 1
    own = [0] if B else [0, 1]
    per_t = 12288 if B else 8192
    rounds = [[0, 1], [2, 3], [4]] if B else [[0, 1, 2], [3, 4]]
    stats = SCR + 24576
    vl = [V(F + t) for t in range(5)]
    vq8 = V(F + 5)
    vWr = [V(F + 6 + d) for d in range(3)]
    vSt, vRd = V(F + 9), V(F + 10)
    vSa = [V(F + 11 + d) for d in range(3)]
    st = lambda d, t: V(F + 14 + (d * 5 + t) * 2, 2)
    p.nop(4)
    for t in range(5): p("v_accvgpr_read_b32", vl[t], LA(t)[0])
    p("v_and_b32", vq8, 15, vLane); p("v_lshlrev_b32", vq8, 3, vq8)
    p("s_mul_i32", sT0, sW, 640); p("s_add_u32", sT0, sT0, stats); p("v_add_u32", vM1, sT0, vq8)
    for t in range(5):
        pr = V(F + 14 + 2 * t, 2)
        p("v_mov_b32", pr[0], MC(t)); p("v_mov_b32", pr[1], vl[t])
        p("ds_write_b64", vM1, pr, mods=f"offset:{t * 128}")
    if B:
        for d in range(1, 4):
            p("s_add_u32", sT0, sW, d); p("s_and_b32", sT0, sT0, 3); p("s_mul_i32", sT0, sT0, 3072)
            p("s_add_u32", sT0, sT0, SCR + (d - 1) * 1024); p("v_add_u32", vWr[d - 1], sT0, vL16)
            p("s_sub_u32", sT0, sW, d); p("s_and_b32", sT0, sT0, 3); p("s_mul_i32", sT0, sT0, 640)
            p("s_add_u32", sT0, sT0, stats); p("v_add_u32", vSa[d - 1], sT0, vq8)
        p("s_mul_i32", sT0, sW, 3072); p("s_add_u32", sT0, sT0, SCR); p("v_add_u32", vRd, sT0, vL16)
        p("s_mul_i32", sT0, sW, 5120); p("s_mul_i32", sT1, sHead, 20480); p("s_add_u32", sT0, sT0, sT1)
    else:
        p("s_xor_b32", sT1, sW, 1)
        p("s_lshl_b32", sT0, sT1, 11); p("s_add_u32", sT0, sT0, SCR); p("v_add_u32", vWr[0], sT0, vL16)
        p("s_mul_i32", sT0, sT1, 640); p("s_add_u32", sT0, sT0, stats); p("v_add_u32", vSa[0], sT0, vq8)
        p("s_lshl_b32", sT0, sW, 11); p("s_add_u32", sT0, sT0, SCR); p("v_add_u32", vRd, sT0, vL16)
        p("s_mul_i32", sT0, sKG, 10240); p("s_mul_i32", sT1, sHD, 20480); p("s_add_u32", sT0, sT0, sT1)
    p("v_add_u32", vSt, sT0, vL16)

    sends = [(d, vWr[d - 1], 0) for d in range(1, 4)] if B else [(2, vWr[0], 0), (3, vWr[0], 1024)]

    def pack(t):
        for f, _, _ in sends:
            a, b = O(t, 2 * f), O(t, 2 * f + 1)
            p("v_cvt_pk_bf16_f32", a[0], a[0], a[1]); p("v_cvt_pk_bf16_f32", a[1], a[2], a[3])
            p("v_cvt_pk_bf16_f32", a[2], b[0], b[1]); p("v_cvt_pk_bf16_f32", a[3], b[2], b[3])

    def write(rts):
        for ti, t in enumerate(rts):
            for f, va, off in sends:
                p("ds_write_b128", va, O(t, 2 * f), mods=f"offset:{ti * per_t + off}")

    for t in rounds[0]: pack(t)
    write(rounds[0])
    for r in rounds[1:]:
        for t in r: pack(t)
    if before_first_barrier: before_first_barrier()
    p.wait(lgkm=0); p("s_barrier")
    if after_first_barrier: after_first_barrier()
    for d in range(nsrc):
        for t in range(5): p("ds_read_b64", st(d, t), vSa[d], mods=f"offset:{t * 128}")
        if d == 1: p.wait(lgkm=0)
    p.wait(lgkm=0)
    x = Sb(0); y = Sb(1)
    first = True
    for t in range(5):
        for d in range(nsrc):
            p("v_sub_f32", x[d], st(d, t)[0], MC(t))
        if nsrc == 3:
            p("v_max3_f32", x[0], Abs(x[0]), Abs(x[1]), Abs(x[2]))
            if first: p("v_mov_b32", x[4], x[0])
            else: p("v_max_f32", x[4], x[4], x[0])
        else:
            if first: p("v_max_f32", x[4], Abs(x[0]), Abs(x[0]), vop3=True)
            else: p("v_max_f32", x[4], Abs(x[0]), x[4], vop3=True)
        first = False
    gen, join = p.uid("epi_gen"), p.uid("epi_join")
    p("v_cmp_lt_f32", VCC, 0, x[4])
    p("s_cbranch_vccnz", gen).tag = "rare"

    src = lambda k, d: V(F + 14 + (k & 1) * 12 + 4 * d, 4)

    def store(t, f, k):
        a, b = O(t, 2 * f), O(t, 2 * f + 1)
        if fused:
            p("v_cvt_pk_bf16_f32", a[0], a[0], a[1]); p("v_cvt_pk_bf16_f32", a[1], a[2], a[3])
            p("v_cvt_pk_bf16_f32", a[2], b[0], b[1]); p("v_cvt_pk_bf16_f32", a[3], b[2], b[3])
            return
        r = Pb(k & 1)
        p("v_cvt_pk_bf16_f32", r[0], a[0], a[1]); p("v_cvt_pk_bf16_f32", r[1], a[2], a[3])
        p("v_cvt_pk_bf16_f32", r[2], b[0], b[1]); p("v_cvt_pk_bf16_f32", r[3], b[2], b[3])
        off = t * 1024 + f * 5120
        if off > 4095:
            p("s_mov_b32", sT1, off)
            p("buffer_store_dwordx4", r, vSt, sO, sT1, mods=f"offen {opol}")
        else:
            p("buffer_store_dwordx4", r, vSt, sO, 0, mods=f"offen offset:{off} {opol}")

    def process(general):
        z = lambda d, t: V(128 + d * 5 + t) if False else None
        if not general:
            for t in range(5):
                p("v_add_f32", x[t], vl[t], st(0, t)[1])
                for d in range(1, nsrc): p("v_add_f32", x[t], x[t], st(d, t)[1])
            for t in range(5): p("v_rcp_f32", y[t], x[t])
        else:
            for t in range(5):
                p("v_max_f32", x[0], MC(t), st(0, t)[0])
                if nsrc == 3: p("v_max3_f32", x[0], x[0], st(1, t)[0], st(2, t)[0])
                p("v_sub_f32", x[1], MC(t), x[0]); p("v_exp_f32", x[1], x[1])
                for d in range(nsrc):
                    p("v_sub_f32", st(d, t)[0], st(d, t)[0], x[0]); p("v_exp_f32", st(d, t)[0], st(d, t)[0])
                p("v_mul_f32", x[2], x[1], vl[t])
                for d in range(nsrc): p("v_fma_f32", x[2], st(d, t)[0], st(d, t)[1], x[2])
                p("v_rcp_f32", x[2], x[2])
                p("v_mul_f32", y[t], x[1], x[2])
                for d in range(nsrc): p("v_mul_f32", st(d, t)[0], st(d, t)[0], x[2])
            for t in range(5):
                for d in range(nsrc): p("v_accvgpr_write_b32", VF(0)[0].__class__("a", 192 + d * 5 + t), st(d, t)[0])
        k = 0
        for ri, rts in enumerate(rounds):
            if ri:
                p("s_barrier")
                write(rts)
                p.wait(lgkm=0); p("s_barrier")
            jobs = [(ti, t, f) for ti, t in enumerate(rts) for f in own]

            def rd(kk, job):
                ti, t, f = job
                for d in range(nsrc):
                    off = ti * per_t + (d * 1024 if B else f * 1024)
                    p("ds_read_b128", src(kk, d), vRd, mods=f"offset:{off}")
            rd(k, jobs[0])
            for ji, job in enumerate(jobs):
                ti, t, f = job
                if ji + 1 < len(jobs):
                    rd(k + 1, jobs[ji + 1]); p.wait(lgkm=nsrc)
                else:
                    p.wait(lgkm=0)
                a, b = O(t, 2 * f), O(t, 2 * f + 1)
                if not general:
                    for d in range(nsrc):
                        p(MF, a, SEL1, src(k, d), a); p(MF, b, SEL2, src(k, d), b)
                    for r in (a, b):
                        for i in range(4): p("v_mul_f32", r[i], r[i], y[t])
                else:
                    for r in (a, b):
                        for i in range(4): p("v_mul_f32", r[i], r[i], y[t])
                    for d in range(nsrc):
                        D1, D2 = x.sub(0, 4), x.sub(4, 4)
                        p(MF, D1, SEL1, src(k, d), 0); p(MF, D2, SEL2, src(k, d), 0)
                        p("v_accvgpr_read_b32", vM1, A(192 + d * 5 + t))
                        for i in range(4):
                            p("v_fma_f32", a[i], D1[i], vM1, a[i]); p("v_fma_f32", b[i], D2[i], vM1, b[i])
                store(t, f, k)
                k += 1

    process(False)
    p("s_branch", join)
    RARE.append((gen, join, lambda: process(True)))
    p.label(join)


RARE = []


sWO, sOUT, sPW, sPR = S(60, 4), S(64, 4), S(24, 4), S(92, 4)
sDBG2 = S(68, 2)
sBR, sGI = S(96), S(97)
WOBASE = 40960
PART_CU = 92 * 1024
OUT_BYTES = 8 * 80 * 1152 * 2


def post_load_ptrs(p, c):
    p("s_load_dwordx2", S(98, 2), S(0, 2), 72 if c.B else 32)
    p("s_load_dwordx4", S(64, 4), S(0, 2), 80)


def post_srds(p, c):
    p("s_mov_b32", sDBG2[0], S(66)); p("s_mov_b32", sDBG2[1], S(67))
    p("s_mov_b32", sT0, S(64)); p("s_mov_b32", sT1, S(65))
    srd_from(p, sOUT, sT0, sT1, None, OUT_BYTES)
    p("s_mul_i32", sT0, sH0, 147456); srd_from(p, sWO, S(98), S(99), sT0, 294912)
    p("s_mov_b32", sBR, 1 if c.B else 0)
    p("s_lshl_b32", sGI, sBR, 3); p("s_add_u32", sGI, sGI, sB)
    p("s_mul_i32", sT0, sGI, 16 * PART_CU); srd_from(p, sPR, sWS[0], sWS[1], sT0, 16 * PART_CU)
    p("s_lshr_b32", sT1, sH0, 1); p("s_mul_i32", sT1, sT1, PART_CU); p("s_add_u32", sT0, sT0, sT1)
    srd_from(p, sPW, sWS[0], sWS[1], sT0, PART_CU)


vD = V(198)
sWOs = S(40 + 4)
sWOl = S(40 + 5)


def post_dma_setup(p):
    l = vLane
    T = lambda i: V(246 + i)
    p("v_lshrrev_b32", T(0), 3, l); p("v_mul_u32_u24", T(0), 1152, T(0))
    p("v_lshrrev_b32", T(1), 4, l); p("v_lshlrev_b32", T(1), 1, T(1)); p("v_xor_b32", T(1), T(1), l); p("v_and_b32", T(1), 7, T(1))
    p("v_lshlrev_b32", T(1), 4, T(1)); p("v_add_u32", vD, T(0), T(1))
    p("s_mul_i32", sWOs, sW, 9216); p("s_lshl_b32", sWOl, sW, 10)


def wo_groups(k, pol=""):
    slot = k % 3
    L = []
    for j in range(9):
        L.append([mk("s_add_u32", M0, sWOl, WOBASE + slot * 36864 + j * 4096), mk("s_add_u32", sT2, sWOs, k * 36864 + j * 128),
                  mk("buffer_load_dwordx4", vD, sWO, sT2, mods=f"offen {pol} lds", tag=f"G{k}")])
    return L


def wo_l2_prefetch(p):
    L = []
    L.append([mk("s_mul_i32", sT3, sB, 36864), mk("s_mul_i32", sT2, sW, 9216), mk("s_add_u32", sT3, sT3, sT2)])
    for j in range(9):
        d = mk("buffer_load_dwordx4", A(0, 4), vL16, sWO, sT3, mods="offen"); d.defs = []
        L[-1].append(d)
        L.append([mk("s_add_u32", sT3, sT3, 1024)])
    return L


def post_phase(p, opt):
    l = vLane
    acc = lambda i, t: V((i * 5 + t) * 4, 4)
    aA = [V(180 + m) for m in range(4)]
    aB = [V(184 + m) for m in range(4)]
    GA = lambda buf, i: A(buf * 36 + 4 * i, 4)
    GB = lambda buf, t: A(72 + buf * 20 + 4 * t, 4)
    T = lambda i: V(246 + i)
    ppol = opt.get("ppol", "sc1")
    for g in wo_groups(2): p.add(g)
    p("v_lshrrev_b32", T(0), 2, l)
    p("v_lshlrev_b32", T(1), 7, T(0)); p("v_and_b32", T(2), 3, l); p("v_lshlrev_b32", T(2), 3, T(2)); p("v_add_u32", T(1), T(1), T(2))
    p("v_bfe_u32", T(0), T(0), 1, 2)
    for m in range(4):
        p("s_add_u32", sT0, sW, m); p("s_and_b32", sT1, sT0, 3); p("s_lshr_b32", sT0, sT0, 2)
        p("s_lshl_b32", sT2, sW, 1); p("s_add_u32", sT0, sT0, sT2); p("s_lshl_b32", sT0, sT0, 12); p("s_add_u32", sT0, sT0, WOBASE)
        p("v_xor_b32", T(3), sT1, T(0)); p("v_lshlrev_b32", T(3), 5, T(3)); p("v_add_u32", T(3), T(3), T(1))
        p("v_add_u32", aA[m], sT0, T(3)); p("v_add_u32", aB[m], 73728, aA[m])
    stamp(p, 7)

    def reads(k):
        slot, buf = k % 3, k & 1
        L = []
        for t in range(5):
            L.append([mk("ds_read_b128", GB(buf, t), vL16, mods=f"offset:{(k * 5 + t) * 1024}")])
        for i in range(9):
            for h in range(2):
                o2 = (i >> 2) * 4096 + h * 2048
                a, off = (aA[i & 3], slot * 36864 + o2) if slot < 2 else (aB[i & 3], o2)
                x = mk("ds_read_b64_tr_b16", GA(buf, i).sub(2 * h, 2), a, mods=f"offset:{off}")
                x.ldsuse = {f"G{k}"}; L.append([x])
        return L

    def mfmas(k):
        buf = k & 1
        return [mk(MF, acc(i, t), GA(buf, i), GB(buf, t), 0 if k == 0 else acc(i, t)) for i in range(9) for t in range(5)]

    vSt = T(0)
    tiles = [(i, t) for i in range(9) for t in range(5)]

    def pack_store(k):
        L = []
        a = acc(*tiles[2 * k])
        L += [mk("v_cvt_pk_bf16_f32", a[0], a[0], a[1]), mk("v_cvt_pk_bf16_f32", a[1], a[2], a[3])]
        if 2 * k + 1 < 45:
            b = acc(*tiles[2 * k + 1])
            L += [mk("v_cvt_pk_bf16_f32", a[2], b[0], b[1]), mk("v_cvt_pk_bf16_f32", a[3], b[2], b[3])]
        else:
            L += [mk("v_mov_b32", a[2], 0), mk("v_mov_b32", a[3], 0)]
        if k * 1024 > 4095:
            L += [mk("s_mov_b32", sT1, k * 1024), mk("buffer_store_dwordx4", a, vSt, sPW, sT1, mods=f"offen {ppol}")]
        else:
            L += [mk("buffer_store_dwordx4", a, vSt, sPW, 0, mods=f"offen offset:{k * 1024} {ppol}")]
        return L

    for k in range(9):
        if k < 8:
            p.wait(vm=18 if k == 0 else (9 if k < 7 else 0))
            p("s_barrier")
            dma = wo_groups(k + 2) if (1 <= k and k + 2 < 8) else []
            fill = dma + reads(k)
        else:
            fill = []
        if k == 8:
            if opt.get("diag"): stamp(p, 2)
            p("s_mul_i32", sT0, sW, 23 * 1024); p("v_add_u32", vSt, sT0, vL16)
            m = mfmas(7)
            done = 0
            for i, x in enumerate(m):
                p.add(x)
                if i % 2 == 1 and i >= 7:
                    p.add(pack_store(done)); done += 1
            stamp(p, 8)
            while done < 23:
                p.add(pack_store(done)); done += 1
        elif k > 0:
            m = mfmas(k - 1)
            n, nf, fi = 36, len(fill), 0
            for i, x in enumerate(m):
                want = min(nf, ((i + 1) * nf + n - 1) // n)
                while fi < want:
                    p.add(fill[fi]); fi += 1
                p.add(x)
            p.wait(lgkm=0)
        else:
            for g in fill: p.add(g)
            p.wait(lgkm=0)
    p.wait(vm=0); p("s_barrier")
    stamp(p, 9)
    skip = p.uid("poll_skip"); loop = p.uid("poll"); out = p.uid("poll_out")
    p("s_cmp_lg_u32", sW, 0); p("s_cbranch_scc1", skip).tag = "notw0"
    p("s_lshl_b32", sT0, sGI, 2)
    if opt.get("dbgstamp"): p("s_add_u32", sT0, sT0, 64)
    p("v_mov_b32", T(1), sT0); p("v_mov_b32", T(2), 1)
    p("s_mov_b64", S(42, 2), EXEC); p("s_mov_b64", EXEC, 1)
    p("global_atomic_add", T(1), T(2), sDBG2, mods="sc1")
    p("s_mov_b32", sLOOP, 0)
    p.label(loop)
    p("global_load_dword", T(3), T(1), sDBG2, mods="sc1"); p.wait(vm=0)
    p("v_readfirstlane_b32", sT0, T(3))
    p("s_add_u32", sLOOP, sLOOP, 1); p("s_cmp_gt_u32", sLOOP, 400000); p("s_cbranch_scc1", out)
    p("s_cmp_lt_u32", sT0, 16)
    if opt.get("sleep", 0):
        p("s_cbranch_scc0", out); p("s_sleep", opt["sleep"]); p("s_branch", loop).tag = "pollback"
    else:
        p("s_cbranch_scc1", loop)
    p.label(out)
    p("s_mov_b64", EXEC, S(42, 2))
    p.label(skip)
    p("s_barrier")
    sWp, sBlk, sOa = S(54), S(55), S(56)
    src = lambda n, j: V(n * 64 + 4 * j, 4)
    D = lambda n, e: V(128 + n * 8 + 4 * e, 4)
    p("v_and_b32", T(1), 15, l); p("v_mul_u32_u24", T(1), 2304, T(1))
    p("v_lshrrev_b32", T(2), 4, l); p("v_lshlrev_b32", T(2), 3, T(2)); p("v_add_u32", T(1), T(1), T(2))
    fin = p.uid("red_fin"); one = p.uid("red_one")
    p("s_lshr_b32", S(44), sH0, 1); p("s_lshl_b32", sT0, sW, 4); p("s_add_u32", S(44), S(44), sT0)
    p("s_add_u32", S(45), S(44), 64)

    def loads(n, su):
        p("s_lshl_b32", sT0, su, 10); p("v_add_u32", T(3 + n), sT0, vL16)
        for j in range(16):
            p("s_mov_b32", sT1, j * PART_CU)
            p("buffer_load_dwordx4", src(n, j), T(3 + n), sPR, sT1, mods=f"offen {ppol}")

    def finish(n, su):
        for j in range(16):
            p(MF, D(n, 0), SEL1, src(n, j), 0 if j == 0 else D(n, 0)); p(MF, D(n, 1), SEL2, src(n, j), 0 if j == 0 else D(n, 1))
        p("s_mul_i32", sWp, su, 2850); p("s_lshr_b32", sWp, sWp, 16); p("s_mul_i32", sT0, sWp, 23); p("s_sub_u32", sBlk, su, sT0)
        for e in range(2):
            lab = p.uid("red_skip")
            p("s_lshl_b32", sT0, sBlk, 1); p("s_add_u32", sT0, sT0, e)
            if e: p("s_cmp_ge_u32", sT0, 45); p("s_cbranch_scc1", lab)
            p("s_mul_i32", sT1, sT0, 52); p("s_lshr_b32", sT1, sT1, 8)
            p("s_mul_i32", sT2, sT1, 5); p("s_sub_u32", sT2, sT0, sT2)
            p("s_mul_i32", sT0, sWp, 9); p("s_add_u32", sT0, sT0, sT1); p("s_lshl_b32", sT0, sT0, 5)
            p("s_lshl_b32", sT2, sT2, 4); p("s_mul_i32", sT1, sB, 80); p("s_add_u32", sT2, sT2, sT1); p("s_mul_i32", sT2, sT2, 2304)
            p("s_add_u32", sT0, sT0, sT2); p("s_mul_i32", sT1, sBR, 1152); p("s_add_u32", sOa, sT0, sT1)
            d = D(n, e); r = V(144 + n * 4 + 2 * e, 2)
            p("v_cvt_pk_bf16_f32", r[0], d[0], d[1]); p("v_cvt_pk_bf16_f32", r[1], d[2], d[3])
            p("buffer_store_dwordx2", r, T(1), sOUT, sOa, mods="offen")
            if e: p.label(lab)

    loads(0, S(44))
    p("s_cmp_ge_u32", S(45), 92); p("s_cbranch_scc1", one).tag = "oneunit"
    loads(1, S(45))
    p.wait(vm=16); finish(0, S(44))
    p.wait(vm=1); finish(1, S(45))
    p("s_branch", fin)
    p.label(one)
    p.wait(vm=0); finish(0, S(44))
    p.label(fin)


def attention_path(p, c, slow_sites, opt):
    L = c.kind
    l = vLane
    base = 40 if c.B else 0
    p("s_load_dwordx4", S(60, 4), S(0, 2), base)
    p("s_load_dwordx4", S(64, 4), S(0, 2), base + 16)
    p("s_load_dwordx2", sWS, S(0, 2), 96)
    p.wait(lgkm=0)
    p("s_mul_i32", sT0, sB, 92160); srd_from(p, sX, S(60), S(61), sT0, 92160)
    p("s_lshl_b32", sT0, sH0, 8); srd_from(p, sWQ, S(66), S(67), sT0, 0)
    p("s_sub_u32", sWQ[2], 4718592, sT0)
    if c.B:
        p("s_lshl_b32", sT0, sB, 5); p("s_add_u32", sT0, sT0, sH0); p("s_lshl_b32", sT0, sT0, 18); ksz = 524288
    else:
        p("s_lshl_b32", sT0, sB, 4); p("s_lshr_b32", sT1, sH0, 1); p("s_add_u32", sT0, sT0, sT1); p("s_lshl_b32", sT0, sT0, 18); ksz = 262144
    srd_from(p, sK, S(62), S(63), sT0, ksz)
    srd_from(p, sVv, S(64), S(65), sT0, ksz)
    p("s_lshl_b32", sT0, sB, 5); p("s_add_u32", sT0, sT0, sH0); p("s_mul_i32", sT0, sT0, 20480)
    if c.B: p("s_add_u32", sT0, sT0, O_BRANCH)
    srd_from(p, sO, sWS[0], sWS[1], sT0, 40960)
    p("s_lshr_b32", sHD, sW, 1); p("s_and_b32", sKG, sW, 1)
    p("s_mov_b32", sC, hex(f2u(CSCALE))); p("s_mov_b32", s24, "0x41c00000")
    p("s_add_u32", sROT, sS, sJ)
    if c.B:
        p("s_lshl_b32", sBASE, sW, 13); p("s_lshl_b32", sRING, sW, 15)
    else:
        p("s_lshl_b32", sBASE, sKG, 13); p("s_lshl_b32", sT0, sHD, 12); p("s_add_u32", sBASE, sBASE, sT0)
        p("s_lshl_b32", sRING, sKG, 16); p("s_add_u32", sRING, sRING, sT0)
    p("s_mov_b32", sN, 0)

    q_phase(p, c, opt)
    stamp(p, 1)
    opol = opt.get("opol", "")
    if STAMP["on"] and STAMP.get("q"):
        p("s_lshl_b32", sT0, sWG, 2); p("s_add_u32", sT0, sT0, sW); p("s_lshl_b32", sT0, sT0, 8); p("s_add_u32", sT0, sT0, 17 << 20)
        p("v_lshlrev_b32", V(251), 2, vLane); p("v_add_u32", V(251), sT0, V(251))
        p("global_store_dword", V(251), V(250), sWS)
    if c.B:
        calc_off(p, c); p.add(dma_tile(c, "K", 2, "K1")); p.add(dma_tile(c, "V", 3, "V1"))
        att_setup2(p, c)
        p.add(mkneed("K"))
    else:
        for n in range(2, EXP.get("la", 4)):
            calc_off(p, c); p.add(dma_tile(c, "K", 2 * n, f"K{n}")); p.add(dma_tile(c, "V", 2 * n + 1, f"V{n}"))
        att_setup2(p, c)
        p.add(mkneed("K")); p("s_barrier")
    fused = opt.get("fused", False)
    if fused: post_load_ptrs(p, c)
    p.add(k_reads(0, "K0"))
    p.wait(lgkm=0)
    if c.B:
        calc_off(p, c); p.add(dma_tile(c, "K", 0, "K2"))
    if fused: post_srds(p, c)

    def wo_start():
        post_dma_setup(p)
        for k in range(2):
            for g in wo_groups(k): p.add(g)

    def args(n):
        ks = (2 * n + 2) % c.nslots; vs = (2 * n + 1) % c.nslots
        if c.B: dv, dk = vs, ks
        else:
            la = EXP.get("la", 4)
            dv, dk = (2 * (n + la) + 1) % c.nslots, (2 * (n + la)) % c.nslots
        return (n * 5) & 1, ks, vs, dv, dk

    def zero_t4():
        for dt in range(8):
            for i in range(4): p("v_mov_b32", O(4, dt)[i], 0)
        p("v_mov_b32", vM1, 0)
        for i in range(4): p("v_accvgpr_write_b32", LA(4)[i], vM1)

    def copy_groups(gs):
        out = []
        for g in gs:
            ng = []
            for x in g:
                y = mk(x.op, *x.ops, mods=x.mods, tag=x.tag); y.tile = x.tile; ng.append(y)
            out.append(ng)
        return out

    if c.B:
        p("s_mov_b32", sHEAD, 0)
        stamp(p, 2)
        hl = p.uid("head")
        p.label(hl)
        zero_t4()
        p.add(qk_mfmas(0, 0))
        cy = emit_step(p, c, *args(0), True, False, slow_sites, 0, [])
        lab = p.uid("loop")
        p("s_mov_b32", sLOOP, 0)
        p.label(lab)
        cy1 = emit_step(p, c, *args(1), False, False, slow_sites, 1, cy)
        cy2 = emit_step(p, c, *args(2), False, False, slow_sites, 2, cy1)
        p("s_add_u32", sLOOP, sLOOP, 1); p("s_cmp_lt_u32", sLOOP, 3)
        p("s_cbranch_scc1", lab).tag = ("loop", 3)
        def pf_b():
            lab = p.uid("wopf")
            p("s_cmp_eq_u32", sHEAD, 1); p("s_cbranch_scc0", lab).tag = ("headsel", 0)
            for g in wo_l2_prefetch(p): p.add(g)
            p.label(lab)
        emit_step(p, c, *args(7), False, True, slow_sites, 7, copy_groups(cy2), pf_b if (fused and opt.get("wopf", True)) else None)
        emit_drain(p, c, (7 * 5) & 1)
        fin = p.uid("fin")
        if STAMP["on"]:
            p("s_cmp_eq_u32", sHEAD, 1)
            p("s_cbranch_scc0", fin + "a").tag = ("headsel", 0)
            stamp(p, 5)
            p("s_branch", fin + "b")
            p.label(fin + "a")
            stamp(p, 3)
            p.label(fin + "b")
        if not fused:
            epilogue(p, c, sHEAD, opol)
            p("s_cmp_eq_u32", sHEAD, 1)
            p("s_cbranch_scc1", fin).tag = ("headsel", 1)
            for s in range(4):
                for t in range(5):
                    for i in range(4): p("v_accvgpr_mov_b32", Q(s, t)[i], Q2(s, t)[i])
            p("s_mov_b32", sHEAD, 1)
            p("s_barrier")
            stamp(p, 4)
            p("s_branch", hl)
            p.label(fin)
        else:
            l1, l2, l3 = p.uid("h0a"), p.uid("h0b"), p.uid("h0c")
            p("s_cmp_eq_u32", sHEAD, 1); p("s_cbranch_scc1", l1).tag = ("headsel", 1)
            for s in range(4):
                for t in range(5):
                    for i in range(4): p("v_accvgpr_mov_b32", Q(s, t)[i], Q2(s, t)[i])
            p.label(l1)

            def bfb():
                p("s_cmp_eq_u32", sHEAD, 1); p("s_cbranch_scc0", l2).tag = ("headsel", 0)
                p.wait(vm=0)
                p.label(l2)

            def afb():
                p("s_cmp_eq_u32", sHEAD, 1); p("s_cbranch_scc0", l3).tag = ("headsel", 0)
                wo_start()
                p.label(l3)
            epilogue(p, c, sHEAD, opol, True, afb, bfb)
            p("s_cmp_eq_u32", sHEAD, 1)
            p("s_cbranch_scc1", fin).tag = ("headsel", 1)
            for t in range(5):
                for i in range(4): p("v_accvgpr_write_b32", A(80 + 4 * t + i), O(t, 0)[i])
            p("s_mov_b32", sHEAD, 1)
            p("s_barrier")
            stamp(p, 4)
            p("s_branch", hl)
            p.label(fin)
            p("s_mul_i32", sT0, sW, 5120); p("v_add_u32", vM1, sT0, vL16)
            for t in range(5):
                p("ds_write_b128", vM1, A(80 + 4 * t, 4), mods=f"offset:{t * 1024}")
                p("ds_write_b128", vM1, O(t, 0), mods=f"offset:{20480 + t * 1024}")
            p.wait(lgkm=0)
            p("s_branch", "att_post")
    else:
        zero_t4()
        p.add(qk_mfmas(0, 0))
        stamp(p, 2)
        emit_step(p, c, *args(0), True, False, slow_sites, 0, [])
        lab = p.uid("loop")
        p("s_mov_b32", sLOOP, 0)
        p.label(lab)
        for u in range(4):
            emit_step(p, c, *args(1 + u), False, False, slow_sites, 1 + u, [])
        p("s_add_u32", sLOOP, sLOOP, 1); p("s_cmp_lt_u32", sLOOP, 3)
        p("s_cbranch_scc1", lab).tag = ("loop", 3)
        emit_step(p, c, *args(13), False, False, slow_sites, 13, [])
        emit_step(p, c, *args(14), False, False, slow_sites, 14, [])
        def pf_a():
            for g in wo_l2_prefetch(p): p.add(g)
        emit_step(p, c, *args(15), False, True, slow_sites, 15, [], pf_a if (fused and opt.get("wopf", True)) else None)
        emit_drain(p, c, (15 * 5) & 1)
        stamp(p, 3); stamp(p, 4); stamp(p, 5)
        if not fused:
            epilogue(p, c, 0, opol)
        else:
            epilogue(p, c, 0, opol, True, wo_start, lambda: p.wait(vm=0))
            p("s_mul_i32", sT0, sHD, 20480); p("s_mul_i32", sT1, sKG, 10240); p("s_add_u32", sT0, sT0, sT1); p("v_add_u32", vM1, sT0, vL16)
            for f in range(2):
                for t in range(5):
                    p("ds_write_b128", vM1, O(t, 2 * f), mods=f"offset:{f * 5120 + t * 1024}")
            p.wait(lgkm=0)


def gen_att_kernel(name, opt=None):
    opt = opt or {}
    p = Prog()
    slowB, slowA = [], []
    p("s_cmp_ge_u32", sWG, 256); p("s_cbranch_scc1", "att_end")
    STAMP["on"] = bool(opt.get("stamp")); STAMP["q"] = opt.get("qstamp")
    EXP.clear(); EXP.update(opt.get("exp", {}))
    stamp(p, 0)
    if STAMP["on"] and not opt.get("fused"): p("s_memtime", S(86, 2))
    p("v_lshrrev_b32", V(1), 6, V(0)); p("v_and_b32", vLane, 63, V(0))
    p("v_readfirstlane_b32", sW, V(1))
    p("v_lshlrev_b32", vL16, 4, vLane)
    p("s_and_b32", sJ, sWG, 7); p("s_lshr_b32", sS, sWG, 3)
    if opt.get("map", 0) == 0:
        p("s_and_b32", sB, sS, 7)
        p("s_bfe_u32", sT0, sS, "0x10003"); p("s_lshl_b32", sT0, sT0, 1); p("s_lshl_b32", sH0, sJ, 2); p("s_add_u32", sH0, sH0, sT0)
    else:
        p("s_and_b32", sT0, sJ, 1); p("s_lshl_b32", sT0, sT0, 2); p("s_and_b32", sB, sS, 3); p("s_add_u32", sB, sB, sT0)
        p("s_lshr_b32", sT0, sJ, 1); p("s_lshl_b32", sT0, sT0, 2); p("s_bfe_u32", sT1, sS, "0x20002"); p("s_add_u32", sT0, sT0, sT1)
        p("s_lshl_b32", sH0, sT0, 1)
    p("s_cmp_ge_u32", sS, 16); p("s_cbranch_scc1", "att_A").tag = "isA"
    cB, cA = Cfg("B"), Cfg("A")
    only = opt.get("only")
    if only != "A": attention_path(p, cB, slowB, opt)
    p("s_branch", "att_fin")
    p.label("att_A")
    if only != "B": attention_path(p, cA, slowA, opt)
    if opt.get("fused"):
        p.label("att_post")
        p("s_barrier")
        stamp(p, 6)
        post_phase(p, opt)
    p.label("att_fin")
    if opt.get("stamp") and not opt.get("fused"):
        p.wait(vm=0)
        stamp(p, 6); p("s_memtime", S(88, 2)); p("s_load_dwordx2", sWS, S(0, 2), 96); p.wait(lgkm=0)
        p("s_sub_u32", S(84), S(88), S(86)); p("s_mov_b32", S(85), 0)
        p("s_lshl_b32", sT0, sWG, 2); p("s_add_u32", sT0, sT0, sW); p("s_lshl_b32", sT0, sT0, 6); p("s_add_u32", sT0, sT0, 16 << 20)
        p("v_mov_b32", V(4), sT0)
        for i in range(16): p("v_mov_b32", V(8 + i), S(70 + i))
        p("v_cmp_eq_u32", VCC, 0, vL16); p("s_and_saveexec_b64", S(62, 2), VCC); p("s_cbranch_execz", "att_end")
        for i in range(0, 16, 4):
            p("global_store_dwordx4", V(4), V(8 + i, 4), sWS, mods=f"offset:{i * 4}")
    if opt.get("dbgstamp"):
        p.wait(vm=0)
        p("s_memrealtime", S(90, 2)); p.wait(lgkm=0)
        p("s_not_b32", sT0, S(70))
        p("v_mov_b32", V(4), 0); p("v_mov_b32", V(5), sT0)
        p("s_mov_b64", EXEC, 1)
        p("global_atomic_umax", V(4), V(5), sDBG2, mods="sc1")
        p("s_lshl_b32", sT1, sBR, 5); p("s_sub_u32", sT1, 36, sT1)
        for k, sr in enumerate((S(72), S(74), S(76), S(80), S(82), S(88), S(90))):
            p("s_add_u32", sT0, sT1, 4 * k); p("v_mov_b32", V(4), sT0); p("v_mov_b32", V(5), sr)
            p("global_atomic_umax", V(4), V(5), sDBG2, mods="sc1")
        p.wait(vm=0)
    if opt.get("stamp") and opt.get("fused") and not opt.get("dbgstamp"):
        p.wait(vm=0)
        p("s_memrealtime", S(90, 2)); p.wait(lgkm=0)
        p("s_lshl_b32", sT0, sWG, 2); p("s_add_u32", sT0, sT0, sW); p("s_lshl_b32", sT0, sT0, 7); p("s_add_u32", sT0, sT0, 64 << 20)
        p("v_mov_b32", V(4), sT0)
        for i in range(20): p("v_mov_b32", V(8 + i), S(70 + i))
        p("v_mov_b32", V(28), S(90)); p("v_mov_b32", V(29), S(91)); p("v_mov_b32", V(30), 0); p("v_mov_b32", V(31), 0)
        p("v_cmp_eq_u32", VCC, 0, vL16); p("s_and_saveexec_b64", S(62, 2), VCC); p("s_cbranch_execz", "att_end")
        for i in range(0, 24, 4):
            p("global_store_dwordx4", V(4), V(8 + i, 4), sWS, mods=f"offset:{i * 4}")
    p.label("att_end")
    p("s_endpgm")
    emit_slow(p, slowB + slowA)
    for lab, back, fn in RARE:
        p.label(lab); p.nop(4); fn(); p("s_branch", back)
    RARE.clear()
    def mkdec(isA, w):
        def decide(ins, visit):
            tg = ins.tag
            if tg == "isA": return isA
            if tg == "role0": return w != 0
            if tg == "notw0": return w != 0
            if ins.op == "s_cbranch_scc0" and str(ins.target).startswith("poll_out"): return True
            if tg == "oneunit": return w >= 2
            if isinstance(tg, tuple) and tg[0] == "loop": return visit % tg[1] != 0
            if isinstance(tg, tuple) and tg[0] == "headsel":
                return (visit == 1) if tg[1] == 0 else (visit == 2)
            return False
        return decide
    roles = [(isA, w) for isA in (False, True) for w in range(4)]
    if only == "A": roles = [r for r in roles if r[0]]
    if only == "B": roles = [r for r in roles if not r[0]]
    if not EXP.get("nodma"):
        resolve_needs(p.items, [mkdec(*r) for r in roles], lambda di: 4 if roles[di][0] else 8)
    pad_hazards(p)
    for isA, w in roles:
        n, errs = check_trace(p.items, mkdec(isA, w), name=f"{'A' if isA else 'B'}w{w}")
        for e in errs[:6]: print("TRACE:", e)
    return p, LDS_TOTAL


if __name__ == "__main__":
    import build, sys
    name = "att_kernel"
    import json
    opt = dict(stamp=True)
    if len(sys.argv) > 1: opt.update(json.loads(sys.argv[1]))
    p, lds = gen_att_kernel(name, opt)
    txt = f"; @launch kernel={name} grid=(256,1,1) block=(256,1,1) lds={lds}\n" + '.amdgcn_target "amdgcn-amd-amdhsa--gfx950"\n'
    txt += kernel_text(name, p) + KD.format(name=name, vgpr=512, sgpr=102, acc=256)
    open("att.s", "w").write(txt)
    print(build.build("att.s"), len(txt), "instructions:", sum(1 for i in p.items if isinstance(i, Ins)))
```
